```python
import torch

def _softmax(x, axis=-1):
    return torch.softmax(x, dim=axis)

def _gelu(x):
    return torch.nn.functional.gelu(x, approximate='tanh')

def _silu(x):
    return torch.nn.functional.silu(x)

def _sigmoid(x):
    return torch.sigmoid(x)

def _layernorm(x, axis=-1, eps=1e-05):
    m = x.mean(dim=axis, keepdim=True)
    v = x.var(dim=axis, keepdim=True, unbiased=False)
    return (x - m) / torch.sqrt(v + eps)

def _scatter_add(tgt, idx, src, axis=0):
    return tgt.clone().index_add_(axis, idx, src)

def _segment_sum(src, seg, n):
    out = torch.zeros((n,) + src.shape[1:], dtype=src.dtype)
    return out.index_add_(0, seg, src)

def _pad(x, pw):
    flat = tuple((v for pair in reversed(pw) for v in pair))
    return torch.nn.functional.pad(x, flat)
kernel_name = 'recurrent_scan__mha_block__mixer_gmlp__prompt'

def setup_inputs():

    _w = lambda a: (lambda t: t.to(torch.bfloat16) if t.is_floating_point() else t)(torch.as_tensor(a))

    def _A_setup():
        B, S, D, H = (1, 2048, 1024, 32)
        return {'x': _w((lambda *s: torch.randn(*s, dtype=torch.bfloat16) * 0.05)(B, S, D)), 'wqkv': _w((lambda *s: torch.randn(*s, dtype=torch.bfloat16) * 0.05)(D, 3 * D)), 'wo': _w((lambda *s: torch.randn(*s, dtype=torch.bfloat16) * 0.05)(D, D))}
    _A_in = _A_setup()

    def _B_setup():
        B, S, D, F = (1, 2048, 1024, 3584)
        Fh = F // 2
        return {'x': _w((lambda *s: torch.randn(*s, dtype=torch.bfloat16) * 0.05)(B, S, D)), 'w_in': _w((lambda *s: torch.randn(*s, dtype=torch.bfloat16) * 0.8)(D, 2 * Fh)), 'w_sp': _w(0.01 * (lambda *s: torch.randn(*s, dtype=torch.bfloat16) * 0.8)(S, S)), 'b_sp': _w(1.0 + 0.01 * (lambda *s: torch.randn(*s, dtype=torch.bfloat16) * 0.05)(S)), 'w_out': _w((lambda *s: torch.randn(*s, dtype=torch.bfloat16) * 0.05)(Fh, D))}
    _B_in = _B_setup()
    return {'A_x': _A_in['x'], 'A_wqkv': _A_in['wqkv'], 'A_wo': _A_in['wo'], 'B_x': _B_in['x'], 'B_w_in': _B_in['w_in'], 'B_w_sp': _B_in['w_sp'], 'B_b_sp': _B_in['b_sp'], 'B_w_out': _B_in['w_out']}

def reference(A_x, A_wqkv, A_wo, B_x, B_w_in, B_w_sp, B_b_sp, B_w_out):

    def _A_ref(x, wqkv, wo):
        B, S, D = x.shape
        H = 32
        Dh = D // H
        qkv = (lambda x, *d: x.permute(*d))((x @ wqkv).reshape(B, S, 3, H, Dh), 2, 0, 3, 1, 4)
        q, k, v = (qkv[0], qkv[1], qkv[2])
        scores = torch.einsum('bhqd,bhkd->bhqk', q, k) * Dh ** (-0.5)
        p = _softmax(scores, axis=-1)
        o = torch.einsum('bhqk,bhkd->bhqd', p, v)
        return (lambda x, *d: x.permute(*d))(o, 0, 2, 1, 3).reshape(B, S, D) @ wo

    def _B_ref(x, w_in, w_sp, b_sp, w_out):
        B, S, D = x.shape
        F = w_in.shape[-1]
        Fh = F // 2
        z = _gelu(torch.einsum('bsd,df->bsf', x, w_in))
        z1 = z[..., :Fh].clone()
        z2 = _layernorm(z[..., Fh:], axis=-1)
        g = torch.einsum('ts,bsf->btf', w_sp, z2) + b_sp[None, :, None]
        return torch.einsum('bsf,fd->bsd', z1 * g, w_out)
    x = A_x
    xn = _layernorm(x, axis=-1)
    s = _A_ref(xn, A_wqkv, A_wo)
    g = _silu(_B_ref(xn, B_w_in, B_w_sp, B_b_sp, B_w_out))
    return x + s * g
```

```python
import struct

MB = 1 << 20
WS_XN = 0
WS_Q = 4 * MB
WS_K = 8 * MB
WS_V = 12 * MB
WS_Z1 = 16 * MB
WS_Z2 = 24 * MB
WS_OU = 32 * MB
WS_ST = 46 * MB
WS_END = 48 * MB
OU_MT = 88 * 8192

def f2u(x):
    return struct.unpack("<I", struct.pack("<f", x))[0]

def hx(x):
    return hex(x & 0xFFFFFFFF)

class Asm:
    def __init__(self):
        self.lines = []
    def __call__(self, s):
        for l in s.split("\n"):
            l = l.strip()
            if l:
                self.lines.append("    " + l)
    def label(self, l):
        self.lines.append(l + ":")
    def raw(self, l):
        self.lines.append(l)
    def extend(self, ls):
        for l in ls:
            self(l)
    def text(self):
        return "\n".join(self.lines)

def vr(b, n=1):
    return f"v{b}" if n == 1 else f"v[{b}:{b+n-1}]"
def sr(b, n=1):
    return f"s{b}" if n == 1 else f"s[{b}:{b+n-1}]"

def srd(a, d, base, nbytes, add=0):
    if add:
        a(f"s_add_u32 s{d}, s{base}, {hx(add)}")
        a(f"s_addc_u32 s{d+1}, s{base+1}, 0")
    else:
        a(f"s_mov_b32 s{d}, s{base}")
        a(f"s_mov_b32 s{d+1}, s{base+1}")
    a(f"s_mov_b32 s{d+2}, {hx(nbytes)}")
    a(f"s_mov_b32 s{d+3}, 0x20000")

def interleave(mains, fillers, start=0, every=1):
    out = []
    fi = 0
    for i, m in enumerate(mains):
        out.append(m)
        if i >= start and (i - start) % every == 0 and fi < len(fillers):
            f = fillers[fi]; fi += 1
            out += f if isinstance(f, list) else [f]
    while fi < len(fillers):
        f = fillers[fi]; fi += 1
        out += f if isinstance(f, list) else [f]
    return out

def place(mains, slots):
    out = list(slots.get(-1, []))
    for i, m in enumerate(mains):
        out.append(m)
        out += slots.get(i, [])
    return out

def kd(name, vgpr, sgpr=96, accum=None):
    sgpr = 100 if STAMP else sgpr
    accum = accum or ((vgpr + 3) // 4 * 4)
    return f""".p2align 6
.amdhsa_kernel {name}
  .amdhsa_next_free_vgpr {vgpr}
  .amdhsa_next_free_sgpr {sgpr}
  .amdhsa_accum_offset {accum}
  .amdhsa_group_segment_fixed_size 0
  .amdhsa_kernarg_size 88
  .amdhsa_user_sgpr_count 2
  .amdhsa_user_sgpr_kernarg_segment_ptr 1
  .amdhsa_system_sgpr_workgroup_id_x 1
  .amdhsa_float_denorm_mode_32 3
  .amdhsa_float_denorm_mode_16_64 3
.end_amdhsa_kernel"""

def khead(a, name):
    a.raw(f".globl {name}")
    a.raw(".p2align 8")
    a.raw(f".type {name},@function")
    a.label(name)

def magic_div(d, maxv):
    for sh in range(8, 24):
        m = ((1 << sh) + d - 1) // d
        if all(((x * m) >> sh) == x // d for x in range(maxv)):
            return m, sh
    raise ValueError

import os
STAMP = int(os.environ.get("STAMP", "0"))
WS_DBG = 64 * MB
ST0 = 64
def stamp_start(a):
    if STAMP:
        a(f"s_memrealtime s[{ST0}:{ST0+1}]")
        a(f"s_memtime s[{ST0+2}:{ST0+3}]")
        for k in range(1, 8):
            a(f"s_mov_b64 s[{ST0+2+2*k}:{ST0+3+2*k}], 0")
def stamp(a, k):
    if STAMP:
        a(f"s_memtime s[{ST0+2+2*k}:{ST0+3+2*k}]")
def stamp_end(a, kid, wave_sgpr, tmpv=200):
    if not STAMP: return
    a(f"s_memrealtime s[{ST0+18}:{ST0+19}]")
    a(f"s_memtime s[{ST0+16}:{ST0+17}]")
    a("s_load_dwordx2 s[88:89], s[0:1], 80")
    a(f"s_getreg_b32 s94, hwreg(HW_REG_HW_ID)")
    a(f"s_getreg_b32 s95, hwreg(HW_REG_XCC_ID)")
    a("s_waitcnt lgkmcnt(0)")
    a(f"s_add_u32 s88, s88, {hx(WS_DBG + kid*MB)}")
    a("s_addc_u32 s89, s89, 0")
    a("s_mov_b32 s90, 0x100000")
    a("s_mov_b32 s91, 0x20000")
    a("s_lshl_b32 s92, s2, 4")
    a(f"s_add_u32 s92, s92, s{wave_sgpr}")
    a("s_lshl_b32 s92, s92, 6")
    a("s_mov_b64 exec, 1")
    vals = [ST0] + [ST0+2+2*k for k in range(8)] + [ST0+18, 94, 95]
    for i, sv in enumerate(vals):
        a(f"v_mov_b32 v{tmpv+i}, s{sv}")
    a(f"v_mov_b32 v{tmpv+12}, 0")
    for q in range(3):
        a(f"buffer_store_dwordx4 v[{tmpv+4*q}:{tmpv+4*q+3}], v{tmpv+12}, s[88:91], s92 offen offset:{16*q}")
    a("s_waitcnt vmcnt(0)")
```

```python
from common import *

def gen_ln(a):
    name = "ln_kernel"
    khead(a, name)
    a("s_cmp_ge_u32 s2, 128")
    a("s_cbranch_scc1 ln_done")
    stamp_start(a)
    a("s_load_dwordx2 s[4:5], s[0:1], 0")
    a("s_load_dwordx2 s[6:7], s[0:1], 80")
    a("v_and_b32 v1, 63, v0")
    a("v_lshrrev_b32 v2, 6, v0")
    a("v_and_b32 v3, 15, v1")
    a("v_lshrrev_b32 v4, 4, v1")
    a("v_readfirstlane_b32 s3, v2")
    a("s_lshr_b32 s16, s2, 1")
    a("s_lshl_b32 s16, s16, 5")
    a("s_and_b32 s17, s2, 1")
    a("s_lshl_b32 s17, s17, 2")
    a("s_add_u32 s16, s16, s17")
    a("v_lshrrev_b32 v5, 2, v3")
    a("v_lshlrev_b32 v5, 3, v5")
    a("v_and_b32 v6, 3, v3")
    a("v_add3_u32 v5, v5, v6, s16")
    a("v_lshlrev_b32 v5, 11, v5")
    a("v_lshlrev_b32 v6, 8, v2")
    a("v_lshlrev_b32 v7, 3, v4")
    a("v_add3_u32 v5, v5, v6, v7")
    a("s_waitcnt lgkmcnt(0)")
    srd(a, 8, 4, 2048 * 1024 * 2)
    srd(a, 12, 6, WS_END)
    for sl in range(4):
        for rho in range(2):
            r = 16 + sl * 4 + rho * 2
            a(f"buffer_load_dwordx2 v[{r}:{r+1}], v5, s[8:11], 0 offen offset:{sl*64+rho*32}")
    a("s_lshl_b32 s17, s2, 11")
    a(f"s_add_u32 s17, s17, {hx(WS_ST)}")
    a("v_lshlrev_b32 v8, 2, v0")
    a("v_mov_b32 v9, -1")
    a("buffer_store_dword v9, v8, s[12:15], s17 offen")
    a("v_lshlrev_b32 v10, 5, v3")
    a("v_lshl_add_u32 v11, v2, 2, v10")
    a("s_lshr_b32 s18, s2, 4")
    a("s_lshl_b32 s18, s18, 19")
    a("s_and_b32 s19, s2, 15")
    a("s_lshl_b32 s19, s19, 10")
    a("s_add_u32 s18, s18, s19")
    a("s_lshl_b32 s19, s3, 16")
    a("s_add_u32 s18, s18, s19")
    a("v_lshlrev_b32 v12, 4, v1")
    stamp(a, 1)
    a("s_waitcnt vmcnt(1)")
    stamp(a, 2)
    for k in range(16):
        a(f"v_lshlrev_b32 v{32+2*k}, 16, v{16+k}")
        a(f"v_and_b32 v{33+2*k}, 0xffff0000, v{16+k}")
    def reduce_row(src_first, tag, lds_off):
        a("v_mov_b32 v65, v64")
        a("s_nop 1")
        a("v_permlane32_swap_b32 v64, v65")
        a("s_nop 1")
        a("v_add_f32 v64, v64, v65")
        a("v_mov_b32 v65, v64")
        a("s_nop 1")
        a("v_permlane16_swap_b32 v64, v65")
        a("s_nop 1")
        a("v_add_f32 v64, v64, v65")
        a(f"ds_write_b32 v11, v64 offset:{lds_off}")
        a("s_waitcnt lgkmcnt(0)")
        a("s_barrier")
        a(f"ds_read_b128 v[68:71], v10 offset:{lds_off}")
        a(f"ds_read_b128 v[72:75], v10 offset:{lds_off+16}")
        a("s_waitcnt lgkmcnt(0)")
        a("v_add_f32 v68, v68, v69")
        a("v_add_f32 v70, v70, v71")
        a("v_add_f32 v72, v72, v73")
        a("v_add_f32 v74, v74, v75")
        a("v_add_f32 v68, v68, v70")
        a("v_add_f32 v72, v72, v74")
        a("v_add_f32 v64, v68, v72")
    a("v_add_f32 v64, v32, v33")
    a("v_add_f32 v66, v34, v35")
    for k in range(2, 16):
        a(f"v_add_f32 v64, v64, v{32+2*k}")
        a(f"v_add_f32 v66, v66, v{33+2*k}")
    a("v_add_f32 v64, v64, v66")
    reduce_row(0, "m", 0)
    a(f"v_mul_f32 v76, {hx(f2u(1.0/1024))}, v64")
    a("v_sub_f32 v78, v32, v76")
    a("v_sub_f32 v79, v33, v76")
    a("v_mul_f32 v64, v78, v78")
    a("v_mul_f32 v66, v79, v79")
    for k in range(1, 16):
        a(f"v_sub_f32 v78, v{32+2*k}, v76")
        a(f"v_sub_f32 v79, v{33+2*k}, v76")
        a("v_fmac_f32 v64, v78, v78")
        a("v_fmac_f32 v66, v79, v79")
    a("v_add_f32 v64, v64, v66")
    reduce_row(0, "v", 512)
    a(f"v_mul_f32 v64, {hx(f2u(1.0/1024))}, v64")
    a("v_cvt_pk_bf16_f32 v77, v76, v64")
    a("v_lshlrev_b32 v76, 16, v77")
    a("v_and_b32 v64, 0xffff0000, v77")
    a(f"v_add_f32 v64, {hx(f2u(1e-5))}, v64")
    a("v_cvt_pk_bf16_f32 v64, v64, v64")
    a("v_and_b32 v64, 0xffff0000, v64")
    a("v_sqrt_f32 v64, v64")
    a("s_nop 0")
    a("v_cvt_pk_bf16_f32 v64, v64, v64")
    a("v_and_b32 v64, 0xffff0000, v64")
    a("v_rcp_f32 v64, v64")
    a("s_nop 0")
    for k in range(16):
        a(f"v_sub_f32 v78, v{32+2*k}, v76")
        a(f"v_sub_f32 v79, v{33+2*k}, v76")
        a("v_cvt_pk_bf16_f32 v80, v78, v79")
        a("v_lshlrev_b32 v78, 16, v80")
        a("v_and_b32 v79, 0xffff0000, v80")
        a("v_mul_f32 v78, v78, v64")
        a("v_mul_f32 v79, v79, v64")
        a(f"v_cvt_pk_bf16_f32 v{16+k}, v78, v79")
    stamp(a, 3)
    for sl in range(4):
        a(f"buffer_store_dwordx4 v[{16+4*sl}:{19+4*sl}], v12, s[12:15], s18 offen")
        if sl < 3:
            a("s_add_u32 s18, s18, 16384")
    a("s_waitcnt vmcnt(0)")
    stamp_end(a, 0, 3, 64)
    a.label("ln_done")
    a("s_endpgm")
    return name, kd(name, 88, 32), "grid=(128,1,1) block=(512,1,1) lds=1024"
```

```python
from common import *
import math

SLOT = 32768
NSLOT = 5
WQ_OFF = 16384
WZ_OFF = 24576
NKS = 32

V_A0, V_W0, V_A, V_W, V_DA, V_DW0, V_DW1 = 1, 2, 3, 4, 5, 6, 7
XF = [16, 32]
WF = [48, 76]
ACC = 104
def acc(mb, blk): return ACC + (blk * 4 + mb) * 4
S_W = 3
S_MT, S_JT = 24, 25
S_RD, S_WR = 26, 27
S_KA, S_KW = 28, 29
S_M0A, S_M0W = 30, 31
S_IT = 32
SRD_XN, SRD_W, SRD_WS = 36, 40, 44

def mfma(kind, mb, blk, buf):
    d = acc(mb, blk)
    w = vr(WF[buf] + 4 * blk, 4); x = vr(XF[buf] + 4 * mb, 4)
    if kind == "z2":
        return f"v_mfma_f32_16x16x32_bf16 {vr(d,4)}, {x}, {w}, {vr(d,4)}"
    return f"v_mfma_f32_16x16x32_bf16 {vr(d,4)}, {w}, {x}, {vr(d,4)}"

def frag_reads(kind, buf):
    nb = 6 if kind == "q" else 7
    off = WQ_OFF if kind == "q" else WZ_OFF
    r = []
    xs = [f"ds_read_b128 {vr(XF[buf]+4*mb,4)}, v{V_A} offset:{mb*1024}" for mb in range(4)]
    ws = []
    for blk in range(nb):
        for rho in range(2):
            ws.append(f"ds_read_b64_tr_b16 {vr(WF[buf]+4*blk+2*rho,2)}, v{V_W} offset:{off+rho*4096+blk*32}")
    return ws[:2] + xs + ws[2:]

def dma_groups(kind):
    wstride = 32 * (6144 if kind == "q" else 7168)
    g = []
    g.append([f"s_add_u32 m0, s{S_WR}, s{S_M0A}",
              f"buffer_load_dwordx4 v{V_DA}, s[{SRD_XN}:{SRD_XN+3}], s{S_KA} offen lds"])
    g.append([f"buffer_load_dwordx4 v{V_DA}, s[{SRD_XN}:{SRD_XN+3}], s{S_KA} offen offset:1024 lds",
              f"s_add_u32 s{S_KA}, s{S_KA}, 16384"])
    g.append([f"s_add_u32 m0, s{S_WR}, s{S_M0W}",
              f"buffer_load_dwordx4 v{V_DW0}, s[{SRD_W}:{SRD_W+3}], s{S_KW} offen lds"])
    g.append([f"buffer_load_dwordx4 v{V_DW1}, s[{SRD_W}:{SRD_W+3}], s{S_KW} offen offset:1024 lds",
              f"s_add_u32 s{S_KW}, s{S_KW}, {wstride}"])
    for x in (0, 2):
        g[x].insert(1, "s_nop 0")
    return g

def slot_advance():
    return [f"s_mov_b32 s{S_WR}, s{S_RD}",
            f"s_add_u32 s{S_RD}, s{S_RD}, {SLOT}",
            f"s_cmp_eq_u32 s{S_RD}, {SLOT*NSLOT}",
            f"s_cselect_b32 s{S_RD}, 0, s{S_RD}",
            f"v_add_u32 v{V_A}, s{S_RD}, v{V_A0}",
            f"v_add_u32 v{V_W}, s{S_RD}, v{V_W0}"]

def step(a, kind, s, buf, vm, do_read, do_dma):
    nb = 6 if kind == "q" else 7
    a(f"s_waitcnt vmcnt({vm}) lgkmcnt(0)" if vm is not None else "s_waitcnt lgkmcnt(0)")
    if do_read:
        a("s_barrier")
    ms = [mfma(kind, mb, blk, buf) for blk in range(nb) for mb in range(4)]
    slots = {}
    if do_read:
        rd = frag_reads(kind, buf ^ 1)
        for i, r in enumerate(rd):
            slots.setdefault(i, []).append(r)
    if do_dma:
        n = len(ms)
        pos = [3, 8, 13, 18] if kind == "q" else [4, 10, 16, 21]
        for p, g in zip(pos, dma_groups(kind)):
            slots.setdefault(p, []).extend(g)
    if do_read:
        slots.setdefault(len(ms) - 3, []).extend(slot_advance())
    a.extend(place(ms, slots))

def mainloop(a, kind):
    L = f"g1_{kind}"
    for st in range(NSLOT):
        a(f"s_mov_b32 s{S_WR}, {st*SLOT}")
        for g in dma_groups(kind):
            a.extend(g)
    nb = 6 if kind == "q" else 7
    for r in range(ACC, ACC + nb * 16):
        a(f"v_mov_b32 v{r}, 0")
    a(f"v_mov_b32 v{V_A}, v{V_A0}")
    a(f"v_mov_b32 v{V_W}, v{V_W0}")
    a(f"s_mov_b32 s{S_RD}, 0")
    stamp(a, 1)
    a("s_waitcnt vmcnt(16)")
    a("s_barrier")
    stamp(a, 2)
    a.extend(frag_reads(kind, 0))
    a.extend(slot_advance())
    a(f"s_mov_b32 s{S_IT}, 13")
    a.raw(".p2align 3")
    a.label(L + "_loop")
    step(a, kind, 0, 0, 12, True, True)
    step(a, kind, 1, 1, 12, True, True)
    a(f"s_sub_u32 s{S_IT}, s{S_IT}, 1")
    a(f"s_cmp_lg_u32 s{S_IT}, 0")
    a(f"s_cbranch_scc1 {L}_loop")
    for s in range(26, 32):
        vm = 4 * (min(s + 4, 31) - (s + 1)) if s <= 30 else None
        step(a, kind, s, s & 1, vm, s <= 30, s == 26)
    a("s_nop 7")
    stamp(a, 3)

C_Q = math.log2(math.e) / math.sqrt(32.0)
GC = math.sqrt(2.0 / math.pi)
GA = -2.0 * GC * 0.044715 * math.log2(math.e)
GB = -2.0 * GC * math.log2(math.e)

def gelu_all(a, nregs, T):
    a(f"v_mov_b32 v{T}, {hx(f2u(GA))}"); a(f"v_mov_b32 v{T+1}, {hx(f2u(GA))}")
    a(f"v_mov_b32 v{T+2}, {hx(f2u(GB))}"); a(f"v_mov_b32 v{T+3}, {hx(f2u(GB))}")
    a(f"v_mov_b32 v{T+4}, 1.0"); a(f"v_mov_b32 v{T+5}, 1.0")
    G = 4
    for base in range(0, nregs, 2 * G):
        xs = [ACC + base + 2 * p for p in range(G)]
        ts = [T + 6 + 2 * p for p in range(G)]
        for x, t in zip(xs, ts): a(f"v_pk_mul_f32 {vr(t,2)}, {vr(x,2)}, {vr(x,2)}")
        for x, t in zip(xs, ts): a(f"v_pk_fma_f32 {vr(t,2)}, {vr(t,2)}, {vr(T,2)}, {vr(T+2,2)}")
        for x, t in zip(xs, ts): a(f"v_pk_mul_f32 {vr(t,2)}, {vr(t,2)}, {vr(x,2)}")
        for x, t in zip(xs, ts):
            a(f"v_exp_f32 v{t}, v{t}"); a(f"v_exp_f32 v{t+1}, v{t+1}")
        for x, t in zip(xs, ts): a(f"v_pk_add_f32 {vr(t,2)}, {vr(t,2)}, {vr(T+4,2)}")
        for x, t in zip(xs, ts):
            a(f"v_rcp_f32 v{t}, v{t}"); a(f"v_rcp_f32 v{t+1}, v{t+1}")
        for x, t in zip(xs, ts): a(f"v_pk_mul_f32 {vr(x,2)}, {vr(x,2)}, {vr(t,2)}")

def gen_gemm1(a):
    name = "gemm1_kernel"
    khead(a, name)
    a("s_cmp_ge_u32 s2, 256")
    a("s_cbranch_scc1 g1_done")
    stamp_start(a)
    a("s_load_dwordx2 s[4:5], s[0:1], 8")
    a("s_load_dwordx2 s[6:7], s[0:1], 32")
    a("s_load_dwordx2 s[8:9], s[0:1], 80")
    a("v_lshrrev_b32 v8, 6, v0")
    a("v_and_b32 v9, 63, v0")
    a(f"v_readfirstlane_b32 s{S_W}, v8")
    a("s_and_b32 s10, s2, 7")
    a("s_lshr_b32 s11, s2, 3")
    a("s_and_b32 s12, s10, 1")
    a("s_lshl_b32 s12, s12, 2")
    a("s_lshr_b32 s13, s11, 3")
    a(f"s_add_u32 s{S_MT}, s12, s13")
    a("s_lshr_b32 s12, s10, 1")
    a("s_lshl_b32 s12, s12, 3")
    a("s_and_b32 s13, s11, 7")
    a(f"s_add_u32 s{S_JT}, s12, s13")
    a(f"s_and_b32 s14, s{S_W}, 3")
    a("v_lshlrev_b32 v10, 4, v9")
    a(f"s_lshl_b32 s{S_M0A}, s{S_W}, 11")
    a(f"v_add_u32 v{V_DA}, s{S_M0A}, v10")
    a(f"s_lshl_b32 s{S_KA}, s{S_MT}, 19")
    a("s_lshl_b32 s15, s14, 12")
    a(f"v_add_u32 v{V_A0}, s15, v10")
    a("v_bfe_u32 v11, v9, 2, 2")
    a("v_and_b32 v12, 3, v9")
    a("v_bfe_u32 v13, v9, 4, 1")
    a("v_lshrrev_b32 v14, 5, v9")
    a("v_lshlrev_b32 v15, 11, v14")
    a("v_lshl_add_u32 v15, v12, 3, v15")
    a(f"s_mov_b32 s{S_KW}, 0")
    a("s_waitcnt lgkmcnt(0)")
    srd(a, SRD_XN, 8, 4 * MB)
    srd(a, SRD_WS, 8, WS_END)
    a(f"s_cmp_ge_u32 s{S_W}, 4")
    a("s_cbranch_scc1 g1_zwave")

    srd(a, SRD_W, 4, 1024 * 3072 * 2)
    a("s_lshl_b32 s15, s14, 11")
    a(f"s_add_u32 s{S_M0W}, s15, {WQ_OFF}")
    a("v_mul_u32_u24 v16, 800, v13")
    a("v_mul_u32_u24 v17, 192, v11")
    a(f"v_add3_u32 v{V_W0}, v15, v16, v17")
    m12, s12 = magic_div(12, 128)
    a("s_mul_i32 s16, s14, 49152")
    a(f"s_mul_i32 s17, s{S_JT}, 192")
    a("s_add_u32 s16, s16, s17")
    for inst, vd in ((0, V_DW0), (1, V_DW1)):
        a(f"v_add_u32 v16, {64*inst}, v9")
        a("v_cmp_le_u32 vcc, 50, v16")
        a("v_subrev_u32 v17, 2, v16")
        a("s_nop 0")
        a("v_cndmask_b32 v17, v16, v17, vcc")
        a(f"v_mul_u32_u24 v18, {m12}, v17")
        a(f"v_lshrrev_b32 v18, {s12}, v18")
        a("v_mul_u32_u24 v19, 12, v18")
        a("v_sub_u32 v19, v17, v19")
        a("v_mul_u32_u24 v18, 6144, v18")
        a("v_lshl_add_u32 v18, v19, 4, v18")
        a(f"v_add_u32 v18, s16, v18")
        if inst:
            a("v_subrev_u32 v18, 1024, v18")
        a("v_lshrrev_b32 v19, 1, v16")
        a("v_cmp_eq_u32 vcc, 24, v19")
        a("v_mov_b32 v20, 0x40000000")
        a("s_nop 0")
        a("v_cndmask_b32 v18, v18, v20, vcc")
        a("v_cmp_le_u32 vcc, 98, v16")
        a("s_nop 1")
        a(f"v_cndmask_b32 v{vd}, v18, v20, vcc")
    mainloop(a, "q")
    a("v_and_b32 v8, 15, v9")
    a("v_lshrrev_b32 v10, 4, v9")
    a("v_lshlrev_b32 v11, 9, v10")
    a("v_lshl_add_u32 v11, v8, 4, v11")
    a("v_lshlrev_b32 v12, 6, v8")
    a("v_lshl_add_u32 v12, v10, 4, v12")
    a(f"s_lshl_b32 s16, s{S_MT}, 14")
    a("s_lshl_b32 s17, s14, 12")
    a("s_add_u32 s16, s16, s17")
    a(f"s_add_u32 s16, s16, {hx(WS_Q)}")
    a(f"s_mul_i32 s17, s{S_JT}, 3")
    for hp in range(3):
        a(f"s_add_u32 s18, s17, {hp}")
        a("s_lshl_b32 s19, s18, 17")
        a("s_add_u32 s19, s19, s16")
        a("s_cmp_lt_u32 s18, 32")
        a(f"s_cselect_b32 s20, {hx(f2u(C_Q))}, 1.0")
        for mb in range(4):
            t = 16 + 4 * mb + 16 * (hp & 1)
            for b in range(2):
                r = acc(mb, 2 * hp + b)
                for e in range(4):
                    a(f"v_mul_f32 v{r+e}, s20, v{r+e}")
                a(f"v_cvt_pk_bf16_f32 v{t+2*b}, v{r}, v{r+1}")
                a(f"v_cvt_pk_bf16_f32 v{t+2*b+1}, v{r+2}, v{r+3}")
        a("s_cmp_ge_u32 s18, 64")
        a(f"s_cbranch_scc1 g1_qv{hp}")
        for mb in range(4):
            t = 16 + 4 * mb + 16 * (hp & 1)
            a(f"buffer_store_dwordx4 {vr(t,4)}, v11, s[{SRD_WS}:{SRD_WS+3}], s19 offen offset:{(mb>>1)*2048+(mb&1)*256}")
        a(f"s_branch g1_qe{hp}")
        a.label(f"g1_qv{hp}")
        for mb in range(4):
            t = 16 + 4 * mb + 16 * (hp & 1)
            a(f"buffer_store_dwordx4 {vr(t,4)}, v12, s[{SRD_WS}:{SRD_WS+3}], s19 offen offset:{mb*1024}")
        a.label(f"g1_qe{hp}")
        if hp == 1:
            a("s_waitcnt vmcnt(4)")
    stamp(a, 5)
    a("s_waitcnt vmcnt(0)")
    stamp_end(a, 1, S_W)
    a("s_endpgm")

    a.label("g1_zwave")
    srd(a, SRD_W, 6, 1024 * 3584 * 2)
    a("s_lshl_b32 s15, s14, 11")
    a(f"s_add_u32 s{S_M0W}, s15, {WZ_OFF}")
    a("v_lshl_add_u32 v16, v13, 2, v11")
    a("v_mul_u32_u24 v16, 224, v16")
    a(f"v_add_u32 v{V_W0}, v15, v16")
    m14, s14 = magic_div(14, 128)
    a("s_mul_i32 s16, s14, 57344")
    a(f"s_mul_i32 s17, s{S_JT}, 224")
    a("s_add_u32 s16, s16, s17")
    a(f"s_and_b32 s21, s{S_JT}, 1")
    for inst, vd in ((0, V_DW0), (1, V_DW1)):
        a(f"v_add_u32 v16, {64*inst}, v9")
        a(f"v_mul_u32_u24 v18, {m14}, v16")
        a(f"v_lshrrev_b32 v18, {s14}, v18")
        a("v_mul_u32_u24 v19, 14, v18")
        a("v_sub_u32 v19, v16, v19")
        a("s_lshl_b32 s22, s21, 1")
        a("v_add_u32 v19, s22, v19")
        a("v_cmp_le_u32 vcc, 14, v19")
        a("v_subrev_u32 v17, 14, v19")
        a("s_nop 0")
        a("v_cndmask_b32 v19, v19, v17, vcc")
        a("v_mul_u32_u24 v18, 7168, v18")
        a("v_lshl_add_u32 v18, v19, 4, v18")
        a("v_add_u32 v18, s16, v18")
        if inst:
            a("v_subrev_u32 v18, 1024, v18")
        a("v_mov_b32 v20, 0x40000000")
        a("v_cmp_le_u32 vcc, 112, v16")
        a("s_nop 1")
        a(f"v_cndmask_b32 v{vd}, v18, v20, vcc")
    a(f"s_cmp_ge_u32 s{S_JT}, 16")
    a("s_cbranch_scc1 g1_z2wave")

    mainloop(a, "z1")
    gelu_all(a, 112, 216)
    stamp(a, 4)
    a("v_lshlrev_b32 v10, 4, v9")
    a("v_lshlrev_b32 v11, 3, v9")
    a(f"s_lshl_b32 s16, s{S_MT}, 4")
    a("s_lshl_b32 s17, s14, 2")
    a("s_add_u32 s16, s16, s17")
    a("s_lshl_b32 s16, s16, 4")
    a(f"s_add_u32 s16, s16, s{S_JT}")
    a("s_mul_i32 s16, s16, 3584")
    a(f"s_add_u32 s16, s16, {hx(WS_Z1)}")
    for mb in range(4):
        t0 = 16 + 16 * mb
        for blk in range(7):
            r = acc(mb, blk)
            a(f"v_cvt_pk_bf16_f32 v{t0+2*blk}, v{r}, v{r+1}")
            a(f"v_cvt_pk_bf16_f32 v{t0+2*blk+1}, v{r+2}, v{r+3}")
        for p in range(3):
            a(f"buffer_store_dwordx4 {vr(t0+4*p,4)}, v10, s[{SRD_WS}:{SRD_WS+3}], s16 offen offset:{p*1024}")
        a(f"buffer_store_dwordx2 {vr(t0+12,2)}, v11, s[{SRD_WS}:{SRD_WS+3}], s16 offen offset:3072")
        if mb < 3:
            a(f"s_add_u32 s16, s16, {16*3584}")
    stamp(a, 5)
    a("s_waitcnt vmcnt(0)")
    stamp_end(a, 1, S_W)
    a("s_endpgm")

    a.label("g1_z2wave")
    mainloop(a, "z2")
    gelu_all(a, 112, 216)
    stamp(a, 4)
    for mb in range(4):
        for h in range(2):
            s1 = 16 + mb * 4 + 2 * h; s2 = 32 + mb * 4 + 2 * h
            r0 = acc(mb, 0) + 2 * h; r1 = acc(mb, 1) + 2 * h
            a(f"v_pk_add_f32 {vr(s1,2)}, {vr(r0,2)}, {vr(r1,2)}")
            a(f"v_pk_mul_f32 {vr(s2,2)}, {vr(r0,2)}, {vr(r0,2)}")
    for blk in range(1, 7):
        for mb in range(4):
            for h in range(2):
                s1 = 16 + mb * 4 + 2 * h; s2 = 32 + mb * 4 + 2 * h
                r = acc(mb, blk) + 2 * h
                if blk > 1:
                    a(f"v_pk_add_f32 {vr(s1,2)}, {vr(s1,2)}, {vr(r,2)}")
                a(f"v_pk_fma_f32 {vr(s2,2)}, {vr(r,2)}, {vr(r,2)}, {vr(s2,2)}")
    a("s_nop 1")
    for m in range(2):
        for st in range(2):
            for r in range(4):
                d = 48 + m * 8 + st * 4 + r
                lo = 16 + 16 * st + m * 4 + r
                hi = 16 + 16 * st + (m + 2) * 4 + r
                a(f"v_add_f32_dpp v{d}, v{lo}, v{lo} row_ror:8 row_mask:0xf bank_mask:0x3")
                a(f"v_add_f32_dpp v{d}, v{hi}, v{hi} row_ror:8 row_mask:0xf bank_mask:0xc")
    a("s_nop 1")
    for st in range(2):
        for r in range(4):
            d = 64 + 2 * r + st
            m0 = 48 + st * 4 + r; m1 = 56 + st * 4 + r
            a(f"v_add_f32_dpp v{d}, v{m0}, v{m0} row_ror:12 row_mask:0xf bank_mask:0x5")
            a(f"v_add_f32_dpp v{d}, v{m1}, v{m1} row_ror:4 row_mask:0xf bank_mask:0xa")
    a("s_nop 1")
    for k in range(8):
        a(f"v_add_f32_dpp v{72+k}, v{64+k}, v{64+k} quad_perm:[1,0,3,2] row_mask:0xf bank_mask:0xf")
    a("s_nop 1")
    for k in range(8):
        a(f"v_add_f32_dpp v{64+k}, v{72+k}, v{72+k} quad_perm:[2,3,0,1] row_mask:0xf bank_mask:0xf")
    a("s_mov_b32 s16, 0xfffffffe")
    for k in range(8):
        a(f"v_min_u32 v{64+k}, s16, v{64+k}")
    a(f"s_lshl_b32 s16, s{S_MT}, 2")
    a("s_add_u32 s16, s16, s14")
    a("s_lshl_b32 s16, s16, 13")
    a(f"s_add_u32 s16, s16, {hx(WS_ST)}")
    a(f"s_and_b32 s17, s{S_JT}, 15")
    a("s_lshl_b32 s18, s17, 9")
    a("s_add_u32 s18, s18, s16")
    a("v_bfe_u32 v10, v9, 2, 2")
    a("v_lshrrev_b32 v11, 4, v9")
    a("v_lshlrev_b32 v10, 7, v10")
    a("v_lshl_add_u32 v10, v11, 5, v10")
    a("s_mov_b32 s22, 0x11111111")
    a("s_mov_b32 exec_lo, s22")
    a("s_mov_b32 exec_hi, s22")
    a(f"buffer_store_dwordx4 v[64:67], v10, s[{SRD_WS}:{SRD_WS+3}], s18 offen sc0 sc1")
    a(f"buffer_store_dwordx4 v[68:71], v10, s[{SRD_WS}:{SRD_WS+3}], s18 offen offset:16 sc0 sc1")
    a("s_mov_b64 exec, -1")
    a("v_lshlrev_b32 v10, 3, v9")
    a.label("g1_poll")
    for j in range(16):
        off = j * 512
        if off < 4096:
            a(f"buffer_load_dwordx2 {vr(16+2*j,2)}, v10, s[{SRD_WS}:{SRD_WS+3}], s16 offen offset:{off} sc0 sc1")
        else:
            if off == 4096:
                a("s_add_u32 s19, s16, 4096")
            a(f"buffer_load_dwordx2 {vr(16+2*j,2)}, v10, s[{SRD_WS}:{SRD_WS+3}], s19 offen offset:{off-4096} sc0 sc1")
    a("s_waitcnt vmcnt(0)")
    a("v_max3_u32 v48, v16, v17, v18")
    for k in range(19, 47, 2):
        a(f"v_max3_u32 v48, v48, v{k}, v{k+1}")
    a("v_max_u32 v48, v48, v47")
    a("v_cmp_eq_u32 vcc, -1, v48")
    a("s_nop 4")
    a("s_cbranch_vccz g1_polled")
    a("s_sleep 2")
    a("s_branch g1_poll")
    a.label("g1_polled")
    stamp(a, 6)
    for k in range(1, 16):
        a(f"v_pk_add_f32 v[16:17], v[16:17], {vr(16+2*k,2)}")
    a(f"v_mul_f32 v16, {hx(f2u(1.0/1792))}, v16")
    a(f"v_mul_f32 v17, {hx(f2u(1.0/1792))}, v17")
    a("v_fma_f32 v17, -v16, v16, v17")
    a("v_max_f32 v17, 0, v17")
    a("v_cvt_pk_bf16_f32 v18, v16, v17")
    a("v_lshlrev_b32 v16, 16, v18")
    a("v_and_b32 v17, 0xffff0000, v18")
    a(f"v_add_f32 v17, {hx(f2u(1e-5))}, v17")
    a("v_cvt_pk_bf16_f32 v17, v17, v17")
    a("v_and_b32 v17, 0xffff0000, v17")
    a("v_sqrt_f32 v17, v17")
    a("s_nop 0")
    a("v_cvt_pk_bf16_f32 v17, v17, v17")
    a("v_and_b32 v17, 0xffff0000, v17")
    a("v_rcp_f32 v17, v17")
    a("s_nop 0")
    a("v_mul_f32 v16, v16, v17")
    a("v_sub_f32 v16, 0, v16")
    a("s_lshl_b32 s22, s14, 9")
    a(f"s_add_u32 s22, s22, {3*SLOT}")
    a("v_lshlrev_b32 v11, 2, v9")
    a("v_add_u32 v11, s22, v11")
    a("ds_write_b32 v11, v17")
    a("ds_write_b32 v11, v16 offset:256")
    a("v_lshrrev_b32 v12, 4, v9")
    a("v_lshlrev_b32 v12, 4, v12")
    a("v_add_u32 v12, s22, v12")
    a("s_waitcnt lgkmcnt(0)")
    for mb in range(4):
        a(f"ds_read_b128 {vr(16+4*mb,4)}, v12 offset:{mb*64}")
        a(f"ds_read_b128 {vr(32+4*mb,4)}, v12 offset:{256+mb*64}")
    a(f"s_lshl_b32 s18, s{S_MT}, 3")
    a("s_lshl_b32 s19, s14, 1")
    a("s_add_u32 s18, s18, s19")
    a("s_lshl_b32 s19, s17, 6")
    a("s_add_u32 s18, s18, s19")
    a("s_mul_i32 s18, s18, 7168")
    a(f"s_add_u32 s18, s18, {hx(WS_Z2)}")
    a("s_add_u32 s19, s18, 4096")
    a("v_lshlrev_b32 v10, 4, v9")
    a("s_waitcnt lgkmcnt(0)")
    for P in range(2):
        for blk in range(7):
            t = 48 + 4 * blk + 28 * P
            for b in range(2):
                mb = 2 * P + b
                r = acc(mb, blk)
                for h in range(2):
                    a(f"v_pk_fma_f32 {vr(r+2*h,2)}, {vr(r+2*h,2)}, {vr(16+4*mb+2*h,2)}, {vr(32+4*mb+2*h,2)}")
                a(f"v_cvt_pk_bf16_f32 v{t+2*b}, v{r}, v{r+1}")
                a(f"v_cvt_pk_bf16_f32 v{t+2*b+1}, v{r+2}, v{r+3}")
            so = "s18" if blk < 4 else "s19"
            a(f"buffer_store_dwordx4 {vr(t,4)}, v10, s[{SRD_WS}:{SRD_WS+3}], {so} offen offset:{(blk&3)*1024}")
        if P == 0:
            a("s_add_u32 s18, s18, 7168")
            a("s_add_u32 s19, s19, 7168")
    stamp(a, 5)
    a("s_waitcnt vmcnt(0)")
    stamp_end(a, 1, S_W)
    a.label("g1_done")
    a("s_endpgm")
    return name, kd(name, 256, 64), f"grid=(256,1,1) block=(512,1,1) lds={SLOT*NSLOT}"
```

```python
from common import *
import os

LDS2 = 81920
A_SLOT = 16384
A_NSLOT = 3
A_FLAG = A_SLOT * A_NSLOT
AV_LANE, AV_KA, AV_VA, AV_K0, AV_V0, AV_D = 1, 2, 3, 4, 5, 6
QF = [8, 16]
NM = [24, 40]
SB = [56, 72]
PB = [88, 96]
OA = [104, 120]
LA = [136, 140]
KF = [144, 152]
VF = [160, 168]
ONE = 176
IDX = 180
AT = 184
S_W = 3
AS_RD, AS_WR, AS_K, AS_V, AS_IT, AS_MODE, AS_M0, AS_H, AS_QB, AS_KB = 24, 25, 26, 27, 28, 29, 30, 31, 32, 33
SRD_WS = 36

def a_qk(q, kb):
    s = SB[q]
    return [f"v_mfma_f32_32x32x16_bf16 {vr(s,16)}, {vr(KF[kb],4)}, {vr(QF[q],4)}, {vr(NM[q],16)}",
            f"v_mfma_f32_32x32x16_bf16 {vr(s,16)}, {vr(KF[kb]+4,4)}, {vr(QF[q]+4,4)}, {vr(s,16)}"]
def a_pv(q, vb):
    o = OA[q]; p = PB[q]
    return [f"v_mfma_f32_32x32x16_bf16 {vr(o,16)}, {vr(VF[vb],4)}, {vr(p,4)}, {vr(o,16)}",
            f"v_mfma_f32_32x32x16_bf16 {vr(o,16)}, {vr(VF[vb]+4,4)}, {vr(p+4,4)}, {vr(o,16)}",
            f"v_smfmac_f32_16x16x64_bf16 {vr(LA[q],4)}, {vr(ONE,4)}, {vr(p,8)}, v{IDX}"]
def a_exp(q):
    s = SB[q]; p = PB[q]
    e = [f"v_exp_f32 v{s+i}, v{s+i}" for i in range(16)]
    c = [f"v_cvt_pk_bf16_f32 v{p+k}, v{s+2*k}, v{s+2*k+1}" for k in range(8)]
    out = []
    out += e[0:4]
    for k in range(6):
        out += [c[k]] + e[4 + 2 * k: 6 + 2 * k]
    out += [c[6], c[7]]
    return out
def a_reads(kt, buf):
    r = [f"ds_read_b128 {vr(KF[buf]+4*t,4)}, v{AV_KA} offset:{kt*2048+t*1024}" for t in range(2)]
    for t in range(2):
        for rho in range(2):
            r.append(f"ds_read_b64_tr_b16 {vr(VF[buf]+4*t+2*rho,2)}, v{AV_VA} offset:{8192+kt*2048+t*1024+rho*512}")
    return r
def a_dma():
    g = []
    g.append([f"s_add_u32 m0, s{AS_WR}, s{AS_M0}", "s_nop 0",
              f"buffer_load_dwordx4 v{AV_D}, s[{SRD_WS}:{SRD_WS+3}], s{AS_K} offen lds"])
    g.append([f"buffer_load_dwordx4 v{AV_D}, s[{SRD_WS}:{SRD_WS+3}], s{AS_K} offen offset:1024 lds",
              f"s_add_u32 s{AS_K}, s{AS_K}, 8192", "s_add_u32 m0, m0, 8192"])
    g.append([f"buffer_load_dwordx4 v{AV_D}, s[{SRD_WS}:{SRD_WS+3}], s{AS_V} offen lds"])
    g.append([f"buffer_load_dwordx4 v{AV_D}, s[{SRD_WS}:{SRD_WS+3}], s{AS_V} offen offset:1024 lds",
              f"s_add_u32 s{AS_V}, s{AS_V}, 8192"])
    return g

def a_slot(q_exp, q_qk, kb, q_pv, vb, extra):
    v = a_exp(q_exp)
    qk = a_qk(q_qk, kb); pv = a_pv(q_pv, vb)
    pos = {-1: [qk[0]], 3: [qk[1]], 8: [pv[0]], 13: [pv[1]], 18: [pv[2]]}
    for k, l in extra.items():
        pos.setdefault(k, [])
        pos[k] = pos[k] + l
    return place(v, pos)

def gen_attn(a):
    a.label("p2_attn")
    a("s_and_b32 s10, s2, 7")
    a("s_bfe_u32 s11, s2, 0x50003")
    a("s_lshl_b32 s10, s10, 2")
    a("s_lshr_b32 s12, s11, 3")
    a(f"s_add_u32 s{AS_H}, s10, s12")
    a(f"s_and_b32 s{AS_QB}, s11, 7")
    a(f"v_lshlrev_b32 v{AV_K0}, 4, v{AV_LANE}")
    a(f"s_lshl_b32 s{AS_M0}, s{S_W}, 11")
    a(f"v_add_u32 v{AV_D}, s{AS_M0}, v{AV_K0}")
    a(f"v_bfe_u32 v{AT}, v{AV_LANE}, 2, 2")
    a(f"v_lshrrev_b32 v{AT+1}, 5, v{AV_LANE}")
    a(f"v_lshl_add_u32 v{AT}, v{AT+1}, 2, v{AT}")
    a(f"v_lshlrev_b32 v{AT}, 6, v{AT}")
    a(f"v_and_b32 v{AT+1}, 3, v{AV_LANE}")
    a(f"v_bfe_u32 v{AT+2}, v{AV_LANE}, 4, 1")
    a(f"v_lshl_add_u32 v{AT+1}, v{AT+1}, 1, v{AT+2}")
    a(f"v_lshl_add_u32 v{AV_V0}, v{AT+1}, 3, v{AT}")
    a(f"s_lshl_b32 s{AS_KB}, s{AS_H}, 17")
    a(f"s_add_u32 s{AS_KB}, s{AS_KB}, {hx(WS_K)}")
    a(f"s_lshl_b32 s12, s{AS_QB}, 14")
    a(f"s_lshl_b32 s13, s{S_W}, 12")
    a("s_add_u32 s12, s12, s13")
    a(f"s_add_u32 s12, s12, s{AS_KB}")
    a(f"s_sub_u32 s12, s12, {hx(WS_K-WS_Q)}")
    a("s_waitcnt lgkmcnt(0)")
    srd(a, SRD_WS, 8, WS_END)
    for q in range(2):
        for t in range(2):
            a(f"buffer_load_dwordx4 {vr(QF[q]+4*t,4)}, v{AV_K0}, s[{SRD_WS}:{SRD_WS+3}], s12 offen offset:{q*2048+t*1024}")
    a(f"v_and_b32 v{AT}, 2, v{AV_LANE}")
    a(f"v_cmp_eq_u32 vcc, 0, v{AT}")
    a(f"v_mov_b32 v{AT+1}, 0x3f803f80")
    a(f"v_and_b32 v{AT}, 1, v{AV_LANE}")
    a(f"v_cndmask_b32 v{ONE}, 0, v{AT+1}, vcc")
    a(f"v_cndmask_b32 v{ONE+1}, 0, v{AT+1}, vcc")
    a(f"v_xor_b32 v{ONE+2}, v{ONE}, v{AT+1}")
    a(f"v_xor_b32 v{ONE+3}, v{ONE}, v{AT+1}")
    a(f"v_mul_u32_u24 v{IDX}, 0xaaaa, v{AT}")
    a(f"v_add_u32 v{IDX}, 0x4444, v{IDX}")
    a(f"s_mov_b32 s{AS_MODE}, 1")
    a.label("p2_restart")
    for t in range(2):
        a(f"buffer_load_dwordx4 {vr(KF[1]+4*t,4)}, v{AV_K0}, s[{SRD_WS}:{SRD_WS+3}], s{AS_KB} offen offset:{t*1024}")
    a(f"s_add_u32 s{AS_K}, s{AS_KB}, 2048")
    a(f"s_add_u32 s{AS_V}, s{AS_KB}, {hx(WS_V-WS_K)}")
    for st in range(A_NSLOT):
        a(f"s_mov_b32 s{AS_WR}, {st*A_SLOT}")
        for g in a_dma():
            a.extend(g)
    a(f"v_mov_b32 v{AT}, {A_FLAG}")
    a(f"v_mov_b32 v{AT+1}, 0")
    a(f"ds_write_b32 v{AT}, v{AT+1}")
    for q in range(2):
        for r in range(16): a(f"v_mov_b32 v{OA[q]+r}, 0")
        for r in range(4): a(f"v_mov_b32 v{LA[q]+r}, 0")
    for r in range(8):
        a(f"v_mov_b32 v{PB[1]+r}, 0")
        a(f"v_mov_b32 v{VF[1]+r}, 0")
    a(f"v_mov_b32 v{AT+4}, 0xff800000")
    a(f"v_mov_b32 v{AT+5}, 0xff800000")
    a(f"s_mov_b32 s{AS_IT}, s{AS_MODE}")
    a(f"s_mov_b32 s12, s{AS_KB}")
    a(f"s_waitcnt vmcnt({4*A_NSLOT})")
    stamp(a, 1)
    a.label("p2_maxloop")
    for q in range(2):
        s = SB[q]
        a(f"v_mfma_f32_32x32x16_bf16 {vr(s,16)}, {vr(KF[1],4)}, {vr(QF[q],4)}, 0")
        a(f"v_mfma_f32_32x32x16_bf16 {vr(s,16)}, {vr(KF[1]+4,4)}, {vr(QF[q]+4,4)}, {vr(s,16)}")
    a("s_nop 15")
    for q in range(2):
        s = SB[q]
        for k in range(8):
            a(f"v_max3_f32 v{AT+4+q}, v{s+2*k}, v{s+2*k+1}, v{AT+4+q}")
    a(f"s_sub_u32 s{AS_IT}, s{AS_IT}, 1")
    a(f"s_cmp_eq_u32 s{AS_IT}, 0")
    a("s_cbranch_scc1 p2_maxdone")
    a("s_add_u32 s12, s12, 2048")
    for t in range(2):
        a(f"buffer_load_dwordx4 {vr(KF[1]+4*t,4)}, v{AV_K0}, s[{SRD_WS}:{SRD_WS+3}], s12 offen offset:{t*1024}")
    a("s_waitcnt vmcnt(0)")
    a("s_branch p2_maxloop")
    a.label("p2_maxdone")
    a(f"s_cmp_eq_u32 s{AS_MODE}, 1")
    a("s_cbranch_scc1 p2_k0ok")
    for t in range(2):
        a(f"buffer_load_dwordx4 {vr(KF[1]+4*t,4)}, v{AV_K0}, s[{SRD_WS}:{SRD_WS+3}], s{AS_KB} offen offset:{t*1024}")
    a("s_waitcnt vmcnt(0)")
    a.label("p2_k0ok")
    for q in range(2):
        m = AT + 4 + q
        a(f"v_mov_b32 v{AT+6}, v{m}")
        a("s_nop 1")
        a(f"v_permlane32_swap_b32 v{m}, v{AT+6}")
        a("s_nop 1")
        a(f"v_max_f32 v{m}, v{m}, v{AT+6}")
        for r in range(16):
            a(f"v_sub_f32 v{NM[q]+r}, 0, v{m}")
    a("s_nop 1")
    a.extend(a_qk(0, 1))
    a(f"s_mov_b32 s{AS_RD}, 0")
    a(f"v_mov_b32 v{AV_KA}, v{AV_K0}")
    a(f"v_mov_b32 v{AV_VA}, v{AV_V0}")
    a(f"s_waitcnt vmcnt({4*(A_NSLOT-1)}) lgkmcnt(0)")
    a("s_barrier")
    a.extend(a_reads(0, 0))
    a("s_nop 7")
    a.extend(a_slot(0, 1, 1, 1, 1, {}))
    a(f"s_mov_b32 s{AS_IT}, 16")
    stamp(a, 2)
    a.raw(".p2align 3")
    a.label("p2_aloop")
    for u in range(4):
        b = u & 1
        pre = ["s_waitcnt lgkmcnt(0)"]
        ex1 = {}
        ex2 = {}
        if u == 3:
            pre = [f"s_waitcnt vmcnt({4*(A_NSLOT-2)}) lgkmcnt(0)", "s_barrier",
                   f"s_mov_b32 s{AS_WR}, s{AS_RD}",
                   f"s_add_u32 s{AS_RD}, s{AS_RD}, {A_SLOT}",
                   f"s_cmp_eq_u32 s{AS_RD}, {A_SLOT*A_NSLOT}",
                   f"s_cselect_b32 s{AS_RD}, 0, s{AS_RD}"]
            ex1[0] = [f"v_add_u32 v{AV_KA}, s{AS_RD}, v{AV_K0}", f"v_add_u32 v{AV_VA}, s{AS_RD}, v{AV_V0}"]
            for p, g in zip((2, 7, 12, 17), a_dma()):
                ex2[p] = g
        rd = a_reads((u + 1) & 3, b ^ 1)
        for p, r in zip((1, 4, 6, 9, 11, 14), rd):
            ex1.setdefault(p, []).append(r)
        a.extend(pre)
        a.extend(a_slot(1, 0, b, 0, b, ex1))
        a.extend(a_slot(0, 1, b, 1, b, ex2))
    a(f"s_sub_u32 s{AS_IT}, s{AS_IT}, 1")
    a(f"s_cmp_lg_u32 s{AS_IT}, 0")
    a("s_cbranch_scc1 p2_aloop")
    stamp(a, 3)
    a("s_nop 15")
    a(f"v_and_b32 v{AT}, 16, v{AV_LANE}")
    a(f"v_cmp_eq_u32 vcc, 0, v{AT}")
    for q in range(2):
        l = LA[q]
        a(f"v_add_f32 v{l}, v{l}, v{l+1}")
        a(f"v_add_f32 v{l+2}, v{l+2}, v{l+3}")
        a(f"v_cndmask_b32 v{l}, v{l+2}, v{l}, vcc")
    a(f"s_cmp_lg_u32 s{AS_MODE}, 1")
    a("s_cbranch_scc1 p2_afin")
    a(f"v_add_f32 v{AT}, v{LA[0]}, v{LA[1]}")
    a(f"s_mov_b32 s12, {hx(f2u(2.0**60))}")
    a(f"v_cmp_ngt_f32 vcc, s12, v{AT}")
    a("s_nop 4")
    a("s_cbranch_vccz p2_nobad")
    a(f"v_mov_b32 v{AT}, {A_FLAG}")
    a(f"v_mov_b32 v{AT+1}, 1")
    a(f"ds_write_b32 v{AT}, v{AT+1}")
    a.label("p2_nobad")
    a("s_waitcnt vmcnt(0) lgkmcnt(0)")
    a("s_barrier")
    a(f"v_mov_b32 v{AT}, {A_FLAG}")
    a(f"ds_read_b32 v{AT+1}, v{AT}")
    a("s_waitcnt lgkmcnt(0)")
    a(f"v_readfirstlane_b32 s12, v{AT+1}")
    a("s_cmp_eq_u32 s12, 0")
    a("s_cbranch_scc1 p2_afin")
    a(f"s_mov_b32 s{AS_MODE}, 64")
    a("s_barrier")
    a("s_branch p2_restart")
    a.label("p2_afin")
    a(f"v_bfe_u32 v{AT}, v{AV_LANE}, 4, 1")
    a(f"v_lshlrev_b32 v{AT}, 10, v{AT}")
    a(f"v_lshrrev_b32 v{AT+1}, 5, v{AV_LANE}")
    a(f"v_lshl_add_u32 v{AT}, v{AT+1}, 8, v{AT}")
    a(f"v_and_b32 v{AT+1}, 15, v{AV_LANE}")
    a(f"v_lshl_add_u32 v{AT}, v{AT+1}, 4, v{AT}")
    a(f"s_lshl_b32 s12, s{AS_QB}, 1")
    a(f"s_lshr_b32 s13, s{S_W}, 1")
    a("s_add_u32 s12, s12, s13")
    a(f"s_mul_i32 s12, s12, {OU_MT}")
    a(f"s_lshl_b32 s13, s{AS_H}, 13")
    a("s_add_u32 s12, s12, s13")
    a(f"s_and_b32 s13, s{S_W}, 1")
    a("s_lshl_b32 s13, s13, 12")
    a("s_add_u32 s12, s12, s13")
    a(f"s_add_u32 s12, s12, {hx(WS_OU)}")
    for q in range(2):
        a(f"v_rcp_f32 v{LA[q]}, v{LA[q]}")
    a("s_nop 0")
    for q in range(2):
        o = OA[q]
        for r in range(16):
            a(f"v_mul_f32 v{o+r}, v{o+r}, v{LA[q]}")
        t = SB[q]
        for ch in range(2):
            a(f"v_cvt_pk_bf16_f32 v{t+4*ch}, v{o+4*ch}, v{o+4*ch+1}")
            a(f"v_cvt_pk_bf16_f32 v{t+4*ch+1}, v{o+4*ch+2}, v{o+4*ch+3}")
            a(f"v_cvt_pk_bf16_f32 v{t+4*ch+2}, v{o+8+4*ch}, v{o+8+4*ch+1}")
            a(f"v_cvt_pk_bf16_f32 v{t+4*ch+3}, v{o+8+4*ch+2}, v{o+8+4*ch+3}")
            a(f"buffer_store_dwordx4 {vr(t+4*ch,4)}, v{AT}, s[{SRD_WS}:{SRD_WS+3}], s12 offen offset:{q*2048+ch*512}")
    stamp(a, 5)
    a("s_waitcnt vmcnt(0)")
    stamp_end(a, 2, S_W)
    a("s_endpgm")

G_SLOT = 14336
G_NSLOT = 4
GV_A0, GV_A, GV_D, GV_W0, GV_W1 = 2, 3, 4, 5, 6
AF = [16, 44]
WB = [72, 88, 104]
GACC = 120
Z1R = 176
GBS = 204
GT = 208
GS_RD, GS_WR, GS_KA, GS_KW, GS_IT, GS_M0, GS_TI, GS_J = 24, 25, 26, 27, 28, 30, 31, 32
SRD_SP, SRD_B = 40, 44

def g_mfma(ab, wb, phi):
    return [f"v_mfma_f32_16x16x32_bf16 {vr(GACC+(be*2+tb)*4,4)}, {vr(AF[ab]+4*be,4)}, {vr(WB[wb]+tb*8+phi*4,4)}, {vr(GACC+(be*2+tb)*4,4)}"
            for be in range(7) for tb in range(2)]
def g_reads(ab, half):
    return [f"ds_read_b128 {vr(AF[ab]+4*be,4)}, v{GV_A} offset:{half*7168+be*1024}" for be in range(7)]
def g_dma():
    ld = lambda off: f"buffer_load_dwordx4 v{GV_D}, s[{SRD_WS}:{SRD_WS+3}], s{GS_KA} offen offset:{off} lds"
    return [[f"s_add_u32 m0, s{GS_WR}, s{GS_M0}", "s_nop 0", ld(0)], [ld(1024)], [ld(2048)],
            ["s_mov_b32 exec_hi, 0", ld(3072), "s_mov_b32 exec_hi, -1", f"s_add_u32 s{GS_KA}, s{GS_KA}, {G_SLOT}"]]
def g_wloads(wb):
    r = []
    for tb in range(2):
        for phi in range(2):
            r.append([f"buffer_load_dwordx4 {vr(WB[wb]+tb*8+phi*4,4)}, v{GV_W0+tb}, s[{SRD_SP}:{SRD_SP+3}], s{GS_KW} offen offset:{phi*64}"])
    r[-1].append(f"s_add_u32 s{GS_KW}, s{GS_KW}, 128")
    return r
def g_adv():
    return [f"s_mov_b32 s{GS_WR}, s{GS_RD}",
            f"s_add_u32 s{GS_RD}, s{GS_RD}, {G_SLOT}",
            f"s_cmp_eq_u32 s{GS_RD}, {G_SLOT*G_NSLOT}",
            f"s_cselect_b32 s{GS_RD}, 0, s{GS_RD}",
            f"v_add_u32 v{GV_A}, s{GS_RD}, v{GV_A0}"]

def g_iter(a, i, dma, wl, vm):
    a("s_waitcnt lgkmcnt(0)")
    a("s_barrier")
    a.extend(g_adv())
    sl = {}
    for p, r in enumerate(g_reads(0, 0)):
        sl.setdefault(p + 1, []).append(r)
    if dma:
        for p, g in zip((2, 5, 8, 11), g_dma()):
            sl.setdefault(p, []).extend(g)
    a.extend(place(g_mfma(1, i % 3, 1), sl))
    a(f"s_waitcnt vmcnt({vm}) lgkmcnt(0)")
    sl = {}
    for p, r in enumerate(g_reads(1, 1)):
        sl.setdefault(p + 1, []).append(r)
    if wl:
        for p, g in zip((2, 5, 8, 11), g_wloads(i % 3)):
            sl.setdefault(p, []).extend(g)
    a.extend(place(g_mfma(0, (i + 1) % 3, 0), sl))

def gen_gemm2(a):
    a.label("p2_gemm2")
    a("s_and_b32 s10, s2, 7")
    a("s_bfe_u32 s11, s2, 0x50003")
    a("s_and_b32 s12, s10, 3")
    a("s_lshl_b32 s12, s12, 2")
    a("s_lshr_b32 s13, s11, 3")
    a(f"s_add_u32 s{GS_TI}, s12, s13")
    a("s_lshr_b32 s12, s10, 2")
    a("s_lshl_b32 s12, s12, 3")
    a("s_and_b32 s13, s11, 7")
    a(f"s_add_u32 s{GS_J}, s12, s13")
    a(f"v_lshlrev_b32 v{GV_A0}, 4, v{AV_LANE}")
    a(f"s_mul_i32 s{GS_M0}, s{S_W}, 3584")
    a(f"v_add_u32 v{GV_D}, s{GS_M0}, v{GV_A0}")
    a(f"s_mul_i32 s{GS_KA}, s{GS_J}, {64*7168}")
    a(f"s_add_u32 s{GS_KA}, s{GS_KA}, {hx(WS_Z2)}")
    a(f"s_mov_b32 s{GS_KW}, 0")
    a(f"s_lshl_b32 s12, s{GS_TI}, 2")
    a(f"s_add_u32 s12, s12, s{S_W}")
    a("s_lshl_b32 s13, s12, 5")
    a(f"v_bfe_u32 v{GT}, v{AV_LANE}, 2, 2")
    a(f"v_lshlrev_b32 v{GT}, 3, v{GT}")
    a(f"v_and_b32 v{GT+1}, 3, v{AV_LANE}")
    a(f"v_add3_u32 v{GT}, v{GT}, v{GT+1}, s13")
    a(f"v_lshrrev_b32 v{GT+1}, 4, v{AV_LANE}")
    a(f"v_lshlrev_b32 v{GT+1}, 4, v{GT+1}")
    a(f"v_lshl_add_u32 v{GV_W0}, v{GT}, 12, v{GT+1}")
    a(f"v_add_u32 v{GV_W1}, 0x4000, v{GV_W0}")
    a(f"v_lshlrev_b32 v{GT+2}, 1, v{GT}")
    a(f"v_lshlrev_b32 v{GT+3}, 3, v{AV_LANE}")
    a("s_lshl_b32 s14, s12, 5")
    a(f"s_add_u32 s14, s14, s{GS_J}")
    a("s_mul_i32 s14, s14, 3584")
    a(f"s_add_u32 s14, s14, {hx(WS_Z1)}")
    a(f"s_add_u32 s15, s14, {16*3584}")
    a("s_waitcnt lgkmcnt(0)")
    srd(a, SRD_WS, 8, WS_END)
    srd(a, SRD_SP, 4, 2048 * 2048 * 2)
    srd(a, SRD_B, 6, 4096)
    def D(st):
        a(f"s_mov_b32 s{GS_WR}, {st*G_SLOT}")
        for g in g_dma(): a.extend(g)
    def Wl(b):
        for g in g_wloads(b): a.extend(g)
    D(0); Wl(0); D(1); D(2); Wl(1); D(3); Wl(2)
    for r in range(56): a(f"v_mov_b32 v{GACC+r}, 0")
    a(f"v_mov_b32 v{GV_A}, v{GV_A0}")
    a(f"s_mov_b32 s{GS_RD}, 0")
    stamp(a, 1)
    a("s_waitcnt vmcnt(20)")
    a("s_barrier")
    stamp(a, 2)
    a.extend(g_reads(0, 0))
    a("s_waitcnt lgkmcnt(0)")
    sl = {}
    for p, r in enumerate(g_reads(1, 1)):
        sl.setdefault(p + 1, []).append(r)
    a.extend(place(g_mfma(0, 0, 0), sl))
    a("s_waitcnt vmcnt(16)")
    a(f"s_mov_b32 s{GS_IT}, 9")
    a.raw(".p2align 3")
    a.label("p2_gloop")
    for i in range(3):
        g_iter(a, i, True, True, 12)
    a(f"s_sub_u32 s{GS_IT}, s{GS_IT}, 1")
    a(f"s_cmp_lg_u32 s{GS_IT}, 0")
    a("s_cbranch_scc1 p2_gloop")
    g_iter(a, 27, True, True, 12)
    g_iter(a, 28, False, True, 8)
    for tb in range(2):
        so = "s14" if tb == 0 else "s15"
        for p in range(3):
            a(f"buffer_load_dwordx4 {vr(Z1R+tb*14+4*p,4)}, v{GV_A0}, s[{SRD_WS}:{SRD_WS+3}], {so} offen offset:{p*1024}")
        a(f"buffer_load_dwordx2 {vr(Z1R+tb*14+12,2)}, v{GT+3}, s[{SRD_WS}:{SRD_WS+3}], {so} offen offset:3072")
        a(f"buffer_load_ushort v{GBS+tb}, v{GT+2}, s[{SRD_B}:{SRD_B+3}], 0 offen offset:{tb*8}")
    g_iter(a, 29, False, False, 14)
    g_iter(a, 30, False, False, 10)
    a("s_waitcnt lgkmcnt(0)")
    a.extend(g_mfma(1, 31 % 3, 1))
    stamp(a, 3)
    a(f"s_and_b32 s16, s{GS_J}, 1")
    a(f"s_mul_i32 s17, s{GS_J}, 7")
    a("s_add_u32 s17, s17, s16")
    a("s_lshr_b32 s17, s17, 1")
    a("s_add_u32 s17, s17, 32")
    a("s_lshl_b32 s17, s17, 13")
    a(f"s_mul_i32 s18, s{GS_TI}, {OU_MT}")
    a("s_add_u32 s17, s17, s18")
    a(f"s_lshl_b32 s18, s{S_W}, 11")
    a("s_add_u32 s17, s17, s18")
    a(f"s_add_u32 s17, s17, {hx(WS_OU)}")
    a("s_add_u32 s18, s17, 8192")
    a("s_add_u32 s19, s17, 16384")
    a(f"s_mov_b32 s20, {3*8192}")
    a("s_cmp_eq_u32 s16, 0")
    a(f"s_cselect_b32 s20, s20, {hx(-8192+8)}")
    a("s_add_u32 s20, s20, s17")
    a("s_waitcnt vmcnt(0)")
    for tb in range(2):
        a(f"v_lshlrev_b32 v{GBS+tb}, 16, v{GBS+tb}")
    for tb in range(2):
        for be in range(7):
            c = GACC + (be * 2 + tb) * 4
            z = Z1R + tb * 14 + 2 * be
            t = GT + 4
            for e in range(4):
                a(f"v_add_f32 v{c+e}, v{c+e}, v{GBS+tb}")
            a(f"v_lshlrev_b32 v{t}, 16, v{z}")
            a(f"v_and_b32 v{t+1}, 0xffff0000, v{z}")
            a(f"v_lshlrev_b32 v{t+2}, 16, v{z+1}")
            a(f"v_and_b32 v{t+3}, 0xffff0000, v{z+1}")
            for e in range(4):
                a(f"v_mul_f32 v{c+e}, v{c+e}, v{t+e}")
            d = 16 + tb * 16 + 2 * be
            a(f"v_cvt_pk_bf16_f32 v{d}, v{c}, v{c+1}")
            a(f"v_cvt_pk_bf16_f32 v{d+1}, v{c+2}, v{c+3}")
        for p in range(3):
            a(f"buffer_store_dwordx4 {vr(16+tb*16+4*p,4)}, v{GV_A0}, s[{SRD_WS}:{SRD_WS+3}], s{17+p} offen offset:{tb*1024}")
        a(f"buffer_store_dwordx2 {vr(16+tb*16+12,2)}, v{GV_A0}, s[{SRD_WS}:{SRD_WS+3}], s20 offen offset:{tb*1024}")
    stamp(a, 5)
    a("s_waitcnt vmcnt(0)")
    stamp_end(a, 2, S_W, 220)
    a("s_endpgm")

def gen_phase2(a):
    name = "phase2_kernel"
    khead(a, name)
    a("s_cmp_ge_u32 s2, 512")
    a("s_cbranch_scc1 p2_done")
    stamp_start(a)
    a("s_load_dwordx4 s[4:7], s[0:1], 40")
    a("s_load_dwordx2 s[8:9], s[0:1], 80")
    a("v_lshrrev_b32 v8, 6, v0")
    a(f"v_and_b32 v{AV_LANE}, 63, v0")
    a(f"v_readfirstlane_b32 s{S_W}, v8")
    a("s_cmp_ge_u32 s2, 256")
    a("s_cbranch_scc1 p2_gemm2")
    gen_attn(a)
    gen_gemm2(a)
    a.label("p2_done")
    a("s_endpgm")
    return name, kd(name, 240, 64), f"grid=(512,1,1) block=(256,1,1) lds={LDS2}"
```

```python
from common import *
import math

SLOT = 24576
NSLOT = 6
W_OFF = 16384
NST = 44
V_LANE, V_A0, V_A, V_W0a, V_W0b, V_Wa, V_Wb, V_DA, V_DW = 1, 2, 3, 4, 5, 6, 7, 8, 9
FR = [16, 48]
ACC = [80, 96]
XR = 112
T = 120
S_W = 3
S_MT, S_NT, S_RD, S_WR, S_KA, S_KW, S_M0A, S_M0W, S_IT = 24, 25, 26, 27, 28, 29, 30, 31, 32
SRD_WS, SRD_WO, SRD_WOUT, SRD_X, SRD_OUT = 36, 40, 44, 48, 52

def mf(buf, accs):
    r = []
    for kk in range(2):
        for mb in range(2):
            for b in range(2):
                d = ACC[accs] + (mb * 2 + b) * 4
                r.append(f"v_mfma_f32_16x16x32_bf16 {vr(d,4)}, {vr(FR[buf]+16+(kk*2+b)*4,4)}, {vr(FR[buf]+(kk*2+mb)*4,4)}, {vr(d,4)}")
    return r
def reads(buf):
    r = []
    for kk in range(2):
        for mb in range(2):
            r.append(f"ds_read_b128 {vr(FR[buf]+(kk*2+mb)*4,4)}, v{V_A} offset:{kk*8192+mb*1024}")
        for b in range(2):
            for rho in range(2):
                r.append(f"ds_read_b64_tr_b16 {vr(FR[buf]+16+(kk*2+b)*4+2*rho,2)}, v{V_Wa+b} offset:{W_OFF+kk*4096+rho*2048}")
    return r
def dma(srdw):
    return [[f"s_add_u32 m0, s{S_WR}, s{S_M0A}", "s_nop 0",
             f"buffer_load_dwordx4 v{V_DA}, s[{SRD_WS}:{SRD_WS+3}], s{S_KA} offen lds"],
            [f"buffer_load_dwordx4 v{V_DA}, s[{SRD_WS}:{SRD_WS+3}], s{S_KA} offen offset:1024 lds",
             f"s_add_u32 s{S_KA}, s{S_KA}, 16384"],
            [f"s_add_u32 m0, s{S_WR}, s{S_M0W}", "s_nop 0",
             f"buffer_load_dwordx4 v{V_DW}, s[{srdw}:{srdw+3}], s{S_KW} offen lds",
             f"s_add_u32 s{S_KW}, s{S_KW}, {64*2048}"]]
def adv():
    return [f"s_mov_b32 s{S_WR}, s{S_RD}",
            f"s_add_u32 s{S_RD}, s{S_RD}, {SLOT}",
            f"s_cmp_eq_u32 s{S_RD}, {SLOT*NSLOT}",
            f"s_cselect_b32 s{S_RD}, 0, s{S_RD}",
            f"v_add_u32 v{V_A}, s{S_RD}, v{V_A0}",
            f"v_add_u32 v{V_Wa}, s{S_RD}, v{V_W0a}",
            f"v_add_u32 v{V_Wb}, s{S_RD}, v{V_W0b}"]

def step(a, buf, accs, vm, do_read, srdw):
    a(f"s_waitcnt vmcnt({vm}) lgkmcnt(0)" if vm is not None else "s_waitcnt lgkmcnt(0)")
    if do_read:
        a("s_barrier")
    sl = {}
    if srdw is not None:
        for p, g in zip((-1, 0, 1), dma(srdw)):
            sl.setdefault(p, []).extend(g)
    if do_read:
        rd = reads(buf ^ 1)
        for k, r in enumerate(rd):
            sl.setdefault(min(k // 2, 5), []).append(r)
        sl.setdefault(6, []).extend(adv())
    a.extend(place(mf(buf, accs), sl))

def gen_out(a):
    name = "out_kernel"
    khead(a, name)
    a("s_cmp_ge_u32 s2, 256")
    a("s_cbranch_scc1 k3_done")
    stamp_start(a)
    a("s_load_dwordx2 s[4:5], s[0:1], 0")
    a("s_load_dwordx2 s[6:7], s[0:1], 16")
    a("s_load_dwordx4 s[8:11], s[0:1], 56")
    a("s_load_dwordx2 s[12:13], s[0:1], 80")
    a("v_lshrrev_b32 v10, 6, v0")
    a(f"v_and_b32 v{V_LANE}, 63, v0")
    a(f"v_readfirstlane_b32 s{S_W}, v10")
    a("s_and_b32 s14, s2, 7")
    a("s_lshr_b32 s15, s2, 3")
    a("s_and_b32 s16, s14, 3")
    a("s_lshl_b32 s16, s16, 2")
    a("s_lshr_b32 s17, s15, 3")
    a(f"s_add_u32 s{S_MT}, s16, s17")
    a("s_lshr_b32 s16, s14, 2")
    a("s_lshl_b32 s16, s16, 3")
    a("s_and_b32 s17, s15, 7")
    a(f"s_add_u32 s{S_NT}, s16, s17")
    a(f"s_and_b32 s18, s{S_W}, 3")
    a(f"s_lshr_b32 s19, s{S_W}, 2")
    a(f"v_lshlrev_b32 v10, 4, v{V_LANE}")
    a(f"s_lshl_b32 s{S_M0A}, s{S_W}, 11")
    a(f"v_add_u32 v{V_DA}, s{S_M0A}, v10")
    a(f"s_mul_i32 s{S_KA}, s{S_MT}, {OU_MT}")
    a(f"s_add_u32 s{S_KA}, s{S_KA}, {hx(WS_OU)}")
    a(f"s_lshl_b32 s{S_M0W}, s{S_W}, 10")
    a(f"s_add_u32 s{S_M0W}, s{S_M0W}, {W_OFF}")
    a(f"v_lshrrev_b32 v11, 3, v{V_LANE}")
    a(f"v_bfe_u32 v12, v{V_LANE}, 1, 2")
    a(f"v_bfe_u32 v13, v{V_LANE}, 4, 2")
    a("v_xor_b32 v12, v12, v13")
    a(f"v_and_b32 v13, 1, v{V_LANE}")
    a("v_lshlrev_b32 v13, 4, v13")
    a("v_lshl_add_u32 v12, v12, 5, v13")
    a("v_lshl_add_u32 v12, v11, 11, v12")
    a(f"s_lshl_b32 s20, s{S_W}, 14")
    a(f"s_lshl_b32 s21, s{S_NT}, 7")
    a("s_add_u32 s20, s20, s21")
    a(f"v_add_u32 v{V_DW}, s20, v12")
    a(f"s_mov_b32 s{S_KW}, 0")
    a("s_lshl_b32 s20, s18, 11")
    a(f"v_add_u32 v{V_A0}, s20, v10")
    a(f"v_bfe_u32 v11, v{V_LANE}, 2, 2")
    a(f"v_lshrrev_b32 v12, 4, v{V_LANE}")
    a("v_lshl_add_u32 v13, v12, 2, v11")
    a("v_bfe_u32 v14, v13, 1, 2")
    a(f"v_and_b32 v15, 3, v{V_LANE}")
    a("v_lshlrev_b32 v15, 3, v15")
    a("v_lshl_add_u32 v15, v13, 7, v15")
    a("s_lshl_b32 s20, s19, 1")
    a("v_xor_b32 v14, s20, v14")
    a(f"v_lshl_add_u32 v{V_W0a}, v14, 5, v15")
    a("v_xor_b32 v14, 1, v14")
    a(f"v_lshl_add_u32 v{V_W0b}, v14, 5, v15")
    a("s_waitcnt lgkmcnt(0)")
    srd(a, SRD_WS, 12, WS_END)
    srd(a, SRD_WO, 6, 1024 * 1024 * 2)
    srd(a, SRD_WOUT, 8, 1792 * 1024 * 2)
    srd(a, SRD_X, 4, 2048 * 1024 * 2)
    srd(a, SRD_OUT, 10, 2048 * 1024 * 2)
    for st in range(NSLOT):
        a(f"s_mov_b32 s{S_WR}, {st*SLOT}")
        for g in dma(SRD_WO): a.extend(g)
    a(f"s_lshl_b32 s20, s{S_MT}, 2")
    a("s_add_u32 s20, s20, s18")
    a("s_lshl_b32 s20, s20, 5")
    a(f"v_bfe_u32 v11, v{V_LANE}, 2, 2")
    a("v_lshlrev_b32 v11, 3, v11")
    a(f"v_and_b32 v13, 3, v{V_LANE}")
    a("v_add3_u32 v11, v11, v13, s20")
    a("v_lshlrev_b32 v11, 11, v11")
    a("v_lshl_add_u32 v11, v12, 3, v11")
    a(f"s_lshl_b32 s20, s{S_NT}, 7")
    a("s_lshl_b32 s21, s19, 6")
    a("s_add_u32 s20, s20, s21")
    a("v_add_u32 v11, s20, v11")
    a("v_add_u32 v12, 0x2000, v11")
    for r in range(32): a(f"v_mov_b32 v{ACC[0]+r}, 0")
    a(f"v_mov_b32 v{V_A}, v{V_A0}")
    a(f"v_mov_b32 v{V_Wa}, v{V_W0a}")
    a(f"v_mov_b32 v{V_Wb}, v{V_W0b}")
    a(f"s_mov_b32 s{S_RD}, 0")
    stamp(a, 1)
    a(f"s_waitcnt vmcnt({3*(NSLOT-1)})")
    a("s_barrier")
    stamp(a, 2)
    a.extend(reads(0))
    a.extend(adv())
    VM = 3 * (NSLOT - 2)
    def loop(lbl, n, accs, srdw):
        a(f"s_mov_b32 s{S_IT}, {n}")
        a.raw(".p2align 3")
        a.label(lbl)
        step(a, 0, accs, VM, True, srdw)
        step(a, 1, accs, VM, True, srdw)
        a(f"s_sub_u32 s{S_IT}, s{S_IT}, 1")
        a(f"s_cmp_lg_u32 s{S_IT}, 0")
        a(f"s_cbranch_scc1 {lbl}")
    loop("k3_l1", 5, 0, SRD_WO)
    a(f"s_mov_b32 s{S_KW}, 0")
    loop("k3_l2", 3, 0, SRD_WOUT)
    loop("k3_l3", 11, 1, SRD_WOUT)
    for mb in range(2):
        for b in range(2):
            a(f"buffer_load_dwordx2 {vr(XR+(mb*2+b)*2,2)}, v{11+mb}, s[{SRD_X}:{SRD_X+3}], 0 offen offset:{b*32}")
    for s in range(38, 44):
        vm = 3 * (min(s + NSLOT - 1, NST - 1) - (s + 1)) + 4 if s < 43 else None
        step(a, s & 1, 1, vm, s < 43, None)
    stamp(a, 3)
    a("s_waitcnt vmcnt(0)")
    a("s_nop 7")
    a(f"s_mov_b32 s20, {hx(f2u(-math.log2(math.e)))}")
    for k in range(16):
        a(f"v_mul_f32 v{16+k}, s20, v{ACC[1]+k}")
    for k in range(16):
        a(f"v_exp_f32 v{16+k}, v{16+k}")
    for k in range(16):
        a(f"v_add_f32 v{16+k}, 1.0, v{16+k}")
    for k in range(16):
        a(f"v_rcp_f32 v{16+k}, v{16+k}")
    for k in range(16):
        a(f"v_mul_f32 v{16+k}, v{16+k}, v{ACC[1]+k}")
    for k in range(8):
        a(f"v_lshlrev_b32 v{32+2*k}, 16, v{XR+k}")
        a(f"v_and_b32 v{33+2*k}, 0xffff0000, v{XR+k}")
    for k in range(16):
        a(f"v_fmac_f32 v{32+k}, v{16+k}, v{ACC[0]+k}")
    for k in range(8):
        a(f"v_cvt_pk_bf16_f32 v{48+k}, v{32+2*k}, v{33+2*k}")
    for mb in range(2):
        for b in range(2):
            a(f"buffer_store_dwordx2 {vr(48+(mb*2+b)*2,2)}, v{11+mb}, s[{SRD_OUT}:{SRD_OUT+3}], 0 offen offset:{b*32}")
    stamp(a, 5)
    a("s_waitcnt vmcnt(0)")
    stamp_end(a, 3, S_W, 100)
    a.label("k3_done")
    a("s_endpgm")
    return name, kd(name, 128, 64), f"grid=(256,1,1) block=(512,1,1) lds={SLOT*NSLOT}"
```

```python
import sys, importlib
sys.path.insert(0, "gen")
from common import *
import k0_ln, k1_gemm1

HEADER = open("recurrent_scan__mha_block__mixer_gmlp__prompt.s.ref").read().split("; Override launch")[0]

def build(parts, out):
    a = Asm()
    infos = [p(a) for p in parts]
    txt = HEADER
    for name, _, launch in infos:
        txt += f"; @launch kernel={name} {launch}\n"
    txt += '.amdgcn_target "amdgcn-amd-amdhsa--gfx950"\n.text\n'
    txt += a.text() + "\ncode_end:\n"
    txt += '.section .rodata,"a"\n'
    for _, k, _ in infos:
        txt += k + "\n"
    open(out, "w").write(txt)

if __name__ == "__main__":
    parts = [k0_ln.gen_ln, k1_gemm1.gen_gemm1]
    try:
        import k2_attn
        parts.append(k2_attn.gen_phase2)
        import k3_out
        parts.append(k3_out.gen_out)
    except ImportError as e:
        print("partial build:", e)
    out = sys.argv[1] if len(sys.argv) > 1 else "recurrent_scan__mha_block__mixer_gmlp__prompt.s"
    build(parts, out)
    print("wrote", out)
```

```python
import struct

MB = 1 << 20
WS_XN = 0
WS_Q = 4 * MB
WS_K = 8 * MB
WS_V = 12 * MB
WS_Z1 = 16 * MB
WS_Z2 = 24 * MB
WS_OU = 32 * MB
WS_ST = 46 * MB
WS_FL = 47 * MB
FL_LN, FL_1Q, FL_1Z, FL_2A, FL_2G, FL_EP = 0, 32768, 65536, 98304, 131072, 163840
WS_SPI = 48 * MB
WS_WI = 56 * MB
WI_NT = 44 * 8192
WS_END = 64 * MB
OU_MT = 88 * 8192

def f2u(x):
    return struct.unpack("<I", struct.pack("<f", x))[0]

def hx(x):
    return hex(x & 0xFFFFFFFF)

class Asm:
    def __init__(self):
        self.lines = []
    def __call__(self, s):
        for l in s.split("\n"):
            l = l.strip()
            if l:
                self.lines.append("    " + l)
    def label(self, l):
        self.lines.append(l + ":")
    def raw(self, l):
        self.lines.append(l)
    def extend(self, ls):
        for l in ls:
            self(l)
    def text(self):
        return "\n".join(self.lines)

def vr(b, n=1):
    return f"v{b}" if n == 1 else f"v[{b}:{b+n-1}]"
def sr(b, n=1):
    return f"s{b}" if n == 1 else f"s[{b}:{b+n-1}]"

def srd(a, d, base, nbytes, add=0):
    if add:
        a(f"s_add_u32 s{d}, s{base}, {hx(add)}")
        a(f"s_addc_u32 s{d+1}, s{base+1}, 0")
    else:
        a(f"s_mov_b32 s{d}, s{base}")
        a(f"s_mov_b32 s{d+1}, s{base+1}")
    a(f"s_mov_b32 s{d+2}, {hx(nbytes)}")
    a(f"s_mov_b32 s{d+3}, 0x20000")

def interleave(mains, fillers, start=0, every=1):
    out = []
    fi = 0
    for i, m in enumerate(mains):
        out.append(m)
        if i >= start and (i - start) % every == 0 and fi < len(fillers):
            f = fillers[fi]; fi += 1
            out += f if isinstance(f, list) else [f]
    while fi < len(fillers):
        f = fillers[fi]; fi += 1
        out += f if isinstance(f, list) else [f]
    return out

def place(mains, slots):
    out = list(slots.get(-1, []))
    for i, m in enumerate(mains):
        out.append(m)
        out += slots.get(i, [])
    return out

def kd(name, vgpr, sgpr=96, accum=None):
    sgpr = 100 if STAMP else sgpr
    accum = accum or ((vgpr + 3) // 4 * 4)
    return f""".p2align 6
.amdhsa_kernel {name}
  .amdhsa_next_free_vgpr {vgpr}
  .amdhsa_next_free_sgpr {sgpr}
  .amdhsa_accum_offset {accum}
  .amdhsa_group_segment_fixed_size 0
  .amdhsa_kernarg_size 88
  .amdhsa_user_sgpr_count 2
  .amdhsa_user_sgpr_kernarg_segment_ptr 1
  .amdhsa_system_sgpr_workgroup_id_x 1
  .amdhsa_float_denorm_mode_32 3
  .amdhsa_float_denorm_mode_16_64 3
.end_amdhsa_kernel"""

def khead(a, name):
    a.raw(f".globl {name}")
    a.raw(".p2align 8")
    a.raw(f".type {name},@function")
    a.label(name)

def magic_div(d, maxv):
    for sh in range(8, 24):
        m = ((1 << sh) + d - 1) // d
        if all(((x * m) >> sh) == x // d for x in range(maxv)):
            return m, sh
    raise ValueError

import os
STAMP = int(os.environ.get("STAMP", "0"))
WS_DBG = 64 * MB
ST0 = 64
NSTAMP = 10
def stamp_start(a):
    if STAMP:
        a(f"s_memrealtime s[{ST0}:{ST0+1}]")
        a(f"s_memtime s[{ST0+2}:{ST0+3}]")
        for k in range(1, NSTAMP):
            a(f"s_mov_b64 s[{ST0+2+2*k}:{ST0+3+2*k}], 0")
def stamp(a, k):
    if STAMP:
        a(f"s_memtime s[{ST0+2+2*k}:{ST0+3+2*k}]")
def stamp_end(a, kid, wave_sgpr, tmpv=200):
    if not STAMP: return
    a(f"s_memrealtime s[86:87]")
    a(f"s_memtime s[{ST0+2*NSTAMP}:{ST0+2*NSTAMP+1}]")
    a("s_load_dwordx2 s[88:89], s[0:1], 80")
    a(f"s_getreg_b32 s94, hwreg(HW_REG_HW_ID)")
    a(f"s_getreg_b32 s95, hwreg(HW_REG_XCC_ID)")
    a("s_waitcnt lgkmcnt(0)")
    a(f"s_add_u32 s88, s88, {hx(WS_DBG + kid*MB)}")
    a("s_addc_u32 s89, s89, 0")
    a("s_mov_b32 s90, 0x100000")
    a("s_mov_b32 s91, 0x20000")
    a("s_lshl_b32 s92, s2, 4")
    a(f"s_add_u32 s92, s92, s{wave_sgpr}")
    a("s_lshl_b32 s92, s92, 6")
    a("s_mov_b64 exec, 1")
    vals = [ST0] + [ST0+2+2*k for k in range(NSTAMP)] + [86, 94, 95]
    for i, sv in enumerate(vals):
        a(f"v_mov_b32 v{tmpv+i}, s{sv}")
    a(f"v_mov_b32 v{tmpv+16}, 0")
    for q in range(4):
        a(f"buffer_store_dwordx4 v[{tmpv+4*q}:{tmpv+4*q+3}], v{tmpv+16}, s[88:91], s92 offen offset:{16*q}")
    a("s_waitcnt vmcnt(0)")

OPT = os.environ.get("OPT", "pf,wt,cw").split(",")
WT = " sc0 sc1" if "wt" in OPT else ""

def code_warm(a, name, endlabel, vt, st):
    if "cw" not in OPT: return
    a(f"s_getpc_b64 s[{st}:{st+1}]")
    a.label(f"cw_{endlabel}")
    a(f"v_lshlrev_b32 v{vt}, 7, v0")
    a(f"v_min_u32 v{vt}, {endlabel} - cw_{endlabel}, v{vt}")
    a(f"global_load_dword v{vt+1}, v{vt}, s[{st}:{st+1}]")

class VmSim:
    def __init__(self): self.ops = []
    def issue(self, tag, n=1): self.ops.extend([tag] * n)
    def need(self, *tags):
        r = []
        for t in tags:
            idx = max(i for i, o in enumerate(self.ops) if o == t)
            r.append(len(self.ops) - 1 - idx)
        return min(r)

def rare_instrs(tag, sreg, table, tail):
    mask = 0
    for v, _ in table: mask |= 1 << v
    tail.append(f"{tag}_r:")
    for k, (v, ins) in enumerate(table[:-1]):
        tail.append(f"    s_cmp_eq_u32 {sreg}, {v}")
        tail.append(f"    s_cbranch_scc1 {tag}_e{k}")
    for k, (v, ins) in reversed(list(enumerate(table))):
        tail.append(f"{tag}_e{k}:")
        tail += ["    " + x for x in ins]
        tail.append(f"    s_branch {tag}_b")
    return [f"s_bitcmp1_b32 {hx(mask)}, {sreg}", f"s_cbranch_scc1 {tag}_r", f"{tag}_b:"]

def rare_block(a, tag, sreg, table, tail):
    for x in rare_instrs(tag, sreg, table, tail):
        if x.endswith(":"): a.label(x[:-1])
        else: a(x)

XP = os.environ.get("XP", "").split(",")
def xfilter(instrs, pfx):
    out = []
    for x in instrs:
        if pfx + "nolds" in XP and x.startswith("ds_read"): continue
        if pfx + "nomfma" in XP and x.startswith("v_mfma"): continue
        if pfx + "nodma" in XP and x.endswith(" lds"): continue
        if pfx + "noadma" in XP and x.endswith(" lds") and "v5," in x.replace("v8,", "v5,"): continue
        if pfx + "nowdma" in XP and x.endswith(" lds") and "v5," not in x.replace("v8,", "v5,"): continue
        out.append(x)
    return out
```

```python
from common import *

def gen_ln(a):
    name = "ln_kernel"
    khead(a, name)
    a("s_cmp_ge_u32 s2, 256")
    a("s_cbranch_scc1 ln_done")
    a("s_cmp_ge_u32 s2, 128")
    a("s_cbranch_scc1 ln_pf")
    stamp_start(a)
    a("s_load_dwordx2 s[4:5], s[0:1], 0")
    a("s_load_dwordx2 s[6:7], s[0:1], 80")
    a("v_and_b32 v1, 63, v0")
    a("v_lshrrev_b32 v2, 6, v0")
    a("v_and_b32 v3, 15, v1")
    a("v_lshrrev_b32 v4, 4, v1")
    a("v_readfirstlane_b32 s3, v2")
    a("s_lshr_b32 s16, s2, 1")
    a("s_lshl_b32 s16, s16, 5")
    a("s_and_b32 s17, s2, 1")
    a("s_lshl_b32 s17, s17, 2")
    a("s_add_u32 s16, s16, s17")
    a("v_lshrrev_b32 v5, 2, v3")
    a("v_lshlrev_b32 v5, 3, v5")
    a("v_and_b32 v6, 3, v3")
    a("v_add3_u32 v5, v5, v6, s16")
    a("v_lshlrev_b32 v5, 11, v5")
    a("v_lshlrev_b32 v6, 8, v2")
    a("v_lshlrev_b32 v7, 3, v4")
    a("v_add3_u32 v5, v5, v6, v7")
    a("s_waitcnt lgkmcnt(0)")
    srd(a, 8, 4, 2048 * 1024 * 2)
    srd(a, 12, 6, WS_END)
    for sl in range(4):
        for rho in range(2):
            r = 16 + sl * 4 + rho * 2
            a(f"buffer_load_dwordx2 v[{r}:{r+1}], v5, s[8:11], 0 offen offset:{sl*64+rho*32}")
    a("s_lshl_b32 s17, s2, 11")
    a(f"s_add_u32 s17, s17, {hx(WS_ST)}")
    a("v_lshlrev_b32 v8, 2, v0")
    a("v_mov_b32 v9, -1")
    a("buffer_store_dword v9, v8, s[12:15], s17 offen")
    a("v_lshlrev_b32 v10, 5, v3")
    a("v_lshl_add_u32 v11, v2, 2, v10")
    a("s_lshr_b32 s18, s2, 4")
    a("s_lshl_b32 s18, s18, 19")
    a("s_and_b32 s19, s2, 15")
    a("s_lshl_b32 s19, s19, 10")
    a("s_add_u32 s18, s18, s19")
    a("s_lshl_b32 s19, s3, 16")
    a("s_add_u32 s18, s18, s19")
    a("v_lshlrev_b32 v12, 4, v1")
    stamp(a, 1)
    a("s_waitcnt vmcnt(1)")
    stamp(a, 2)
    for k in range(16):
        a(f"v_lshlrev_b32 v{32+2*k}, 16, v{16+k}")
        a(f"v_and_b32 v{33+2*k}, 0xffff0000, v{16+k}")
    def reduce_row(src_first, tag, lds_off):
        a("v_mov_b32 v65, v64")
        a("s_nop 1")
        a("v_permlane32_swap_b32 v64, v65")
        a("s_nop 1")
        a("v_add_f32 v64, v64, v65")
        a("v_mov_b32 v65, v64")
        a("s_nop 1")
        a("v_permlane16_swap_b32 v64, v65")
        a("s_nop 1")
        a("v_add_f32 v64, v64, v65")
        a(f"ds_write_b32 v11, v64 offset:{lds_off}")
        a("s_waitcnt lgkmcnt(0)")
        a("s_barrier")
        a(f"ds_read_b128 v[68:71], v10 offset:{lds_off}")
        a(f"ds_read_b128 v[72:75], v10 offset:{lds_off+16}")
        a("s_waitcnt lgkmcnt(0)")
        a("v_add_f32 v68, v68, v69")
        a("v_add_f32 v70, v70, v71")
        a("v_add_f32 v72, v72, v73")
        a("v_add_f32 v74, v74, v75")
        a("v_add_f32 v68, v68, v70")
        a("v_add_f32 v72, v72, v74")
        a("v_add_f32 v64, v68, v72")
    a("v_add_f32 v64, v32, v33")
    a("v_add_f32 v66, v34, v35")
    for k in range(2, 16):
        a(f"v_add_f32 v64, v64, v{32+2*k}")
        a(f"v_add_f32 v66, v66, v{33+2*k}")
    a("v_add_f32 v64, v64, v66")
    reduce_row(0, "m", 0)
    a(f"v_mul_f32 v76, {hx(f2u(1.0/1024))}, v64")
    a("v_sub_f32 v78, v32, v76")
    a("v_sub_f32 v79, v33, v76")
    a("v_mul_f32 v64, v78, v78")
    a("v_mul_f32 v66, v79, v79")
    for k in range(1, 16):
        a(f"v_sub_f32 v78, v{32+2*k}, v76")
        a(f"v_sub_f32 v79, v{33+2*k}, v76")
        a("v_fmac_f32 v64, v78, v78")
        a("v_fmac_f32 v66, v79, v79")
    a("v_add_f32 v64, v64, v66")
    reduce_row(0, "v", 512)
    a(f"v_mul_f32 v64, {hx(f2u(1.0/1024))}, v64")
    a("v_cvt_pk_bf16_f32 v77, v76, v64")
    a("v_lshlrev_b32 v76, 16, v77")
    a("v_and_b32 v64, 0xffff0000, v77")
    a(f"v_add_f32 v64, {hx(f2u(1e-5))}, v64")
    a("v_cvt_pk_bf16_f32 v64, v64, v64")
    a("v_and_b32 v64, 0xffff0000, v64")
    a("v_sqrt_f32 v64, v64")
    a("s_nop 0")
    a("v_cvt_pk_bf16_f32 v64, v64, v64")
    a("v_and_b32 v64, 0xffff0000, v64")
    a("v_rcp_f32 v64, v64")
    a("s_nop 0")
    for k in range(16):
        a(f"v_sub_f32 v78, v{32+2*k}, v76")
        a(f"v_sub_f32 v79, v{33+2*k}, v76")
        a("v_cvt_pk_bf16_f32 v80, v78, v79")
        a("v_lshlrev_b32 v78, 16, v80")
        a("v_and_b32 v79, 0xffff0000, v80")
        a("v_mul_f32 v78, v78, v64")
        a("v_mul_f32 v79, v79, v64")
        a(f"v_cvt_pk_bf16_f32 v{16+k}, v78, v79")
    stamp(a, 3)
    for sl in range(4):
        a(f"buffer_store_dwordx4 v[{16+4*sl}:{19+4*sl}], v12, s[12:15], s18 offen{WT}")
        if sl < 3:
            a("s_add_u32 s18, s18, 16384")
    a("s_waitcnt vmcnt(0)")
    stamp_end(a, 0, 3, 64)
    a.label("ln_done")
    a("s_endpgm")
    a.label("ln_pf")
    if "pf" in OPT:
        a("s_load_dwordx2 s[4:5], s[0:1], 8")
        a("s_load_dwordx2 s[6:7], s[0:1], 32")
        a("s_getpc_b64 s[16:17]")
        a.label("ln_pc")
        a("s_sub_u32 s3, s2, 128")
        a("s_lshl_b32 s3, s3, 16")
        a("v_lshlrev_b32 v1, 7, v0")
        a("v_add_u32 v1, s3, v1")
        a("s_waitcnt lgkmcnt(0)")
        srd(a, 8, 4, 1024 * 3072 * 2)
        srd(a, 12, 6, 1024 * 3584 * 2)
        a("buffer_load_dword v2, v1, s[8:11], 0 offen")
        a("buffer_load_dword v3, v1, s[12:15], 0 offen")
        a("s_cmp_lg_u32 s2, 255")
        a("s_cbranch_scc1 ln_pfe")
        a("v_lshlrev_b32 v1, 7, v0")
        a("v_min_u32 v1, code_end - ln_pc - 4, v1")
        a("global_load_dword v4, v1, s[16:17]")
        a.label("ln_pfe")
        a("s_waitcnt vmcnt(0)")
    a("s_endpgm")
    return name, kd(name, 88, 32), "grid=(256,1,1) block=(512,1,1) lds=1024"
```

```python
from common import *
import math

SLOT = 32768
NSLOT = 5
WQ_OFF = 16384
WZ_OFF = 24576
NKS = 32

V_A0, V_W0, V_A, V_W, V_DA, V_DW0, V_DW1 = 1, 2, 3, 4, 5, 6, 7
XF = [16, 32]
WF = [48, 76]
ACC = 104
def acc(mb, blk): return ACC + (blk * 4 + mb) * 4
S_W = 3
S_MT, S_JT = 24, 25
S_RD, S_WR = 26, 27
S_KA, S_KW = 28, 29
S_M0A, S_M0W = 30, 31
S_IT = 32
SRD_XN, SRD_W, SRD_WS = 36, 40, 44

def mfma(kind, mb, blk, buf):
    d = acc(mb, blk)
    w = vr(WF[buf] + 4 * blk, 4); x = vr(XF[buf] + 4 * mb, 4)
    if kind == "z2" or (kind == "q" and blk >= 4):
        return f"v_mfma_f32_16x16x32_bf16 {vr(d,4)}, {x}, {w}, {vr(d,4)}"
    return f"v_mfma_f32_16x16x32_bf16 {vr(d,4)}, {w}, {x}, {vr(d,4)}"

def frag_reads(kind, buf):
    nb = 6 if kind == "q" else 7
    off = WQ_OFF if kind == "q" else WZ_OFF
    r = []
    xs = [f"ds_read_b128 {vr(XF[buf]+4*mb,4)}, v{V_A} offset:{mb*1024}" for mb in range(4)]
    ws = []
    for blk in range(nb):
        for rho in range(2):
            ws.append(f"ds_read_b64_tr_b16 {vr(WF[buf]+4*blk+2*rho,2)}, v{V_W} offset:{off+rho*4096+blk*32}")
    return ws[:2] + xs + ws[2:]

def dma_groups(kind):
    wstride = 32 * (6144 if kind == "q" else 7168)
    g = []
    g.append([f"s_add_u32 m0, s{S_WR}, s{S_M0A}",
              f"buffer_load_dwordx4 v{V_DA}, s[{SRD_XN}:{SRD_XN+3}], s{S_KA} offen lds"])
    g.append([f"buffer_load_dwordx4 v{V_DA}, s[{SRD_XN}:{SRD_XN+3}], s{S_KA} offen offset:1024 lds",
              f"s_add_u32 s{S_KA}, s{S_KA}, 16384"])
    g.append([f"s_add_u32 m0, s{S_WR}, s{S_M0W}",
              f"buffer_load_dwordx4 v{V_DW0}, s[{SRD_W}:{SRD_W+3}], s{S_KW} offen lds"])
    g.append([f"buffer_load_dwordx4 v{V_DW1}, s[{SRD_W}:{SRD_W+3}], s{S_KW} offen offset:1024 lds",
              f"s_add_u32 s{S_KW}, s{S_KW}, {wstride}"])
    for x in (0, 2):
        g[x].insert(1, "s_nop 0")
    return g

def slot_advance():
    return [f"s_mov_b32 s{S_WR}, s{S_RD}",
            f"s_add_u32 s{S_RD}, s{S_RD}, {SLOT}",
            f"s_cmp_eq_u32 s{S_RD}, {SLOT*NSLOT}",
            f"s_cselect_b32 s{S_RD}, 0, s{S_RD}",
            f"v_add_u32 v{V_A}, s{S_RD}, v{V_A0}",
            f"v_add_u32 v{V_W}, s{S_RD}, v{V_W0}"]

CP = 232
V_CS, V_CD = 230, 231
S_CO, S_CD = 33, 34
SRD_SP = 48

def cp_load(k):
    return f"buffer_load_dwordx4 {vr(CP+4*k,4)}, v{V_CS}, s[{SRD_SP}:{SRD_SP+3}], 0 offen offset:{k*128}"
def cp_store(k):
    so = f"s{S_CD}" if k < 2 else f"s{S_CD+1}"
    return f"buffer_store_dwordx4 {vr(CP+4*k,4)}, v{V_CD}, s[{SRD_WS}:{SRD_WS+3}], {so} offen offset:{(k&1)*2048}"

def step(a, kind, buf, vm, do_read, dmas, extra=None):
    nb = 6 if kind == "q" else 7
    a(f"s_waitcnt vmcnt({vm}) lgkmcnt(0)" if vm is not None else "s_waitcnt lgkmcnt(0)")
    if do_read:
        a("s_barrier")
    ms = [mfma(kind, mb, blk, buf) for blk in range(nb) for mb in range(4)]
    slots = {}
    if do_read:
        rd = frag_reads(kind, buf ^ 1)
        for i, r in enumerate(rd):
            slots.setdefault(i, []).append(r)
    if len(dmas) == 1:
        pos = [3, 8, 13, 18] if kind == "q" else [4, 10, 16, 21]
    else:
        pos = [0, 2, 4, 6, 9, 12, 15, 18]
    gs = []
    for d in dmas:
        g = dma_groups(kind)
        if d is not None:
            g[0] = [f"s_mov_b32 s{S_WR}, {d}"] + g[0]
        gs += g
    for p, g in zip(pos, gs):
        slots.setdefault(p, []).extend(g)
    if extra:
        slots.setdefault(len(ms) - 5, []).extend(extra)
    if do_read:
        slots.setdefault(len(ms) - 3, []).extend(slot_advance())
    a.extend(xfilter(place(ms, slots), 'g1'))

def mainloop(a, kind):
    L = f"g1_{kind}"
    sim = VmSim()
    for st in range(2):
        a(f"s_mov_b32 s{S_WR}, {st*SLOT}")
        for g in dma_groups(kind):
            a.extend(g)
        sim.issue(st, 4)
        if st == 0:
            a("s_barrier")
    nb = 6 if kind == "q" else 7
    copy_setup(a)
    for r in range(ACC, ACC + nb * 16):
        a(f"v_mov_b32 v{r}, 0")
    a(f"v_mov_b32 v{V_A}, v{V_A0}")
    a(f"v_mov_b32 v{V_W}, v{V_W0}")
    a(f"s_mov_b32 s{S_RD}, 0")
    stamp(a, 1)
    a(f"s_waitcnt vmcnt({sim.need(0)})")
    a("s_barrier")
    stamp(a, 2)
    a.extend(frag_reads(kind, 0))
    a.extend(slot_advance())
    ramp = {0: [2, 3], 1: [4, 5], 2: [6, 7], 3: [8]}
    for s in range(4):
        step(a, kind, s & 1, sim.need(s + 1), True, [(st % NSLOT) * SLOT for st in ramp[s]])
        for st in ramp[s]: sim.issue(st, 4)
    for s in range(4, 26):
        assert sim.need(s + 1) == 12
        sim.issue(s + 5, 4)
    a(f"s_mov_b32 s{S_IT}, 11")
    a.raw(".p2align 3")
    a.label(L + "_loop")
    step(a, kind, 0, 12, True, [None])
    step(a, kind, 1, 12, True, [None])
    a(f"s_add_u32 s10, s{S_IT}, s{S_CO}")
    rare_block(a, L + "_cp", "s10", [(11 - 2 * k, [cp_load(k)]) for k in range(4)], TAIL)
    a(f"s_sub_u32 s{S_IT}, s{S_IT}, 1")
    a(f"s_cmp_lg_u32 s{S_IT}, 0")
    a(f"s_cbranch_scc1 {L}_loop")
    for s in range(26, 32):
        vm = sim.need(s + 1) if s <= 30 else None
        ex = [cp_store(s - 27)] if 27 <= s <= 30 else None
        step(a, kind, s & 1, vm, s <= 30, [None] if s == 26 else [], ex)
        if s == 26: sim.issue(31, 4)
        if ex: sim.issue("st")
    a("s_nop 7")
    stamp(a, 3)

def copy_setup(a):
    a("s_lshl_b32 s10, s2, 3")
    a(f"s_add_u32 s10, s10, s{S_W}")
    a("s_lshr_b32 s11, s10, 4")
    a("s_bfe_u32 s12, s10, 0x10003")
    a("s_and_b32 s13, s10, 7")
    a("v_lshrrev_b32 v10, 3, v9")
    a("s_lshl_b32 s15, s12, 3")
    a("v_add_u32 v10, s15, v10")
    a("s_lshr_b32 s15, s11, 1")
    a("s_lshl_b32 s15, s15, 5")
    a("s_and_b32 s16, s11, 1")
    a("s_lshl_b32 s16, s16, 2")
    a("s_add_u32 s15, s15, s16")
    a("v_lshrrev_b32 v11, 2, v10")
    a("v_lshlrev_b32 v11, 3, v11")
    a("v_and_b32 v12, 3, v10")
    a("v_add3_u32 v11, v11, v12, s15")
    a("v_lshlrev_b32 v11, 12, v11")
    a("v_and_b32 v12, 7, v9")
    a("v_lshl_add_u32 v11, v12, 4, v11")
    a("s_lshl_b32 s15, s13, 9")
    a(f"v_add_u32 v{V_CS}, s15, v11")
    a("v_lshlrev_b32 v12, 8, v12")
    a(f"v_lshl_add_u32 v{V_CD}, v10, 4, v12")
    a(f"s_lshl_b32 s{S_CD}, s11, 16")
    a("s_lshl_b32 s15, s13, 13")
    a(f"s_add_u32 s{S_CD}, s{S_CD}, s15")
    a(f"s_add_u32 s{S_CD}, s{S_CD}, {hx(WS_SPI)}")
    a(f"s_add_u32 s{S_CD+1}, s{S_CD}, 4096")
    a("s_lshr_b32 s15, s2, 3")
    a("s_mul_i32 s16, s15, 43")
    a("s_lshr_b32 s16, s16, 7")
    a("s_mul_i32 s16, s16, 3")
    a(f"s_sub_u32 s{S_CO}, s15, s16")

C_Q = math.log2(math.e) / math.sqrt(32.0)
GC = math.sqrt(2.0 / math.pi)
GA = -2.0 * GC * 0.044715 * math.log2(math.e)
GB = -2.0 * GC * math.log2(math.e)

def gelu_all(a, nregs, T):
    a(f"v_mov_b32 v{T}, {hx(f2u(GA))}"); a(f"v_mov_b32 v{T+1}, {hx(f2u(GA))}")
    a(f"v_mov_b32 v{T+2}, {hx(f2u(GB))}"); a(f"v_mov_b32 v{T+3}, {hx(f2u(GB))}")
    a(f"v_mov_b32 v{T+4}, 1.0"); a(f"v_mov_b32 v{T+5}, 1.0")
    G = 4
    for base in range(0, nregs, 2 * G):
        xs = [ACC + base + 2 * p for p in range(G)]
        ts = [T + 6 + 2 * p for p in range(G)]
        for x, t in zip(xs, ts): a(f"v_pk_mul_f32 {vr(t,2)}, {vr(x,2)}, {vr(x,2)}")
        for x, t in zip(xs, ts): a(f"v_pk_fma_f32 {vr(t,2)}, {vr(t,2)}, {vr(T,2)}, {vr(T+2,2)}")
        for x, t in zip(xs, ts): a(f"v_pk_mul_f32 {vr(t,2)}, {vr(t,2)}, {vr(x,2)}")
        for x, t in zip(xs, ts):
            a(f"v_exp_f32 v{t}, v{t}"); a(f"v_exp_f32 v{t+1}, v{t+1}")
        for x, t in zip(xs, ts): a(f"v_pk_add_f32 {vr(t,2)}, {vr(t,2)}, {vr(T+4,2)}")
        for x, t in zip(xs, ts):
            a(f"v_rcp_f32 v{t}, v{t}"); a(f"v_rcp_f32 v{t+1}, v{t+1}")
        for x, t in zip(xs, ts): a(f"v_pk_mul_f32 {vr(x,2)}, {vr(x,2)}, {vr(t,2)}")

TAIL = []
def gen_gemm1(a):
    del TAIL[:]
    name = "gemm1_kernel"
    khead(a, name)
    a("s_cmp_ge_u32 s2, 256")
    a("s_cbranch_scc1 g1_done")
    stamp_start(a)
    code_warm(a, name, "g1_done", 250, 52)
    a("s_load_dwordx2 s[4:5], s[0:1], 8")
    a("s_load_dwordx2 s[6:7], s[0:1], 32")
    a("s_load_dwordx2 s[8:9], s[0:1], 80")
    a("s_load_dwordx2 s[22:23], s[0:1], 40")
    a("v_lshrrev_b32 v8, 6, v0")
    a("v_and_b32 v9, 63, v0")
    a(f"v_readfirstlane_b32 s{S_W}, v8")
    a("s_and_b32 s10, s2, 7")
    a("s_lshr_b32 s11, s2, 3")
    a("s_and_b32 s12, s10, 1")
    a("s_lshl_b32 s12, s12, 2")
    a("s_lshr_b32 s13, s11, 3")
    a(f"s_add_u32 s{S_MT}, s12, s13")
    a("s_lshr_b32 s12, s10, 1")
    a("s_lshl_b32 s12, s12, 3")
    a("s_and_b32 s13, s11, 7")
    a(f"s_add_u32 s{S_JT}, s12, s13")
    a(f"s_and_b32 s14, s{S_W}, 3")
    a("v_lshlrev_b32 v10, 4, v9")
    a(f"s_lshl_b32 s{S_M0A}, s{S_W}, 11")
    a(f"v_add_u32 v{V_DA}, s{S_M0A}, v10")
    a(f"s_lshl_b32 s{S_KA}, s{S_MT}, 19")
    a("s_lshl_b32 s15, s14, 12")
    a(f"v_add_u32 v{V_A0}, s15, v10")
    a("v_bfe_u32 v11, v9, 2, 2")
    a("v_and_b32 v12, 3, v9")
    a("v_bfe_u32 v13, v9, 4, 1")
    a("v_lshrrev_b32 v14, 5, v9")
    a("v_lshlrev_b32 v15, 11, v14")
    a("v_lshl_add_u32 v15, v12, 3, v15")
    a(f"s_mov_b32 s{S_KW}, 0")
    a("s_waitcnt lgkmcnt(0)")
    srd(a, SRD_XN, 8, 4 * MB)
    srd(a, SRD_WS, 8, WS_END)
    srd(a, SRD_SP, 22, 2048 * 2048 * 2)
    a(f"s_cmp_ge_u32 s{S_W}, 4")
    a("s_cbranch_scc1 g1_zwave")

    srd(a, SRD_W, 4, 1024 * 3072 * 2)
    a("s_lshl_b32 s15, s14, 11")
    a(f"s_add_u32 s{S_M0W}, s15, {WQ_OFF}")
    a("v_mul_u32_u24 v16, 800, v13")
    a("v_mul_u32_u24 v17, 192, v11")
    a(f"v_add3_u32 v{V_W0}, v15, v16, v17")
    m12, s12 = magic_div(12, 128)
    a("s_mul_i32 s16, s14, 49152")
    a(f"s_lshl_b32 s17, s{S_JT}, 7")
    a("s_add_u32 s16, s16, s17")
    a(f"s_lshl_b32 s17, s{S_JT}, 6")
    a(f"s_sub_u32 s17, {4096-128}, s17")
    for inst, vd in ((0, V_DW0), (1, V_DW1)):
        a(f"v_add_u32 v16, {64*inst}, v9")
        a("v_cmp_le_u32 vcc, 50, v16")
        a("v_subrev_u32 v17, 2, v16")
        a("s_nop 0")
        a("v_cndmask_b32 v17, v16, v17, vcc")
        a(f"v_mul_u32_u24 v18, {m12}, v17")
        a(f"v_lshrrev_b32 v18, {s12}, v18")
        a("v_mul_u32_u24 v19, 12, v18")
        a("v_sub_u32 v19, v17, v19")
        a("v_mul_u32_u24 v18, 6144, v18")
        a("v_lshl_add_u32 v18, v19, 4, v18")
        a(f"v_add_u32 v18, s16, v18")
        a("v_lshrrev_b32 v19, 3, v19")
        a("v_mul_lo_u32 v19, v19, s17")
        a("v_add_u32 v18, v18, v19")
        if inst:
            a("v_subrev_u32 v18, 1024, v18")
        a("v_lshrrev_b32 v19, 1, v16")
        a("v_cmp_eq_u32 vcc, 24, v19")
        a("v_mov_b32 v20, 0x40000000")
        a("s_nop 0")
        a("v_cndmask_b32 v18, v18, v20, vcc")
        a("v_cmp_le_u32 vcc, 98, v16")
        a("s_nop 1")
        a(f"v_cndmask_b32 v{vd}, v18, v20, vcc")
    mainloop(a, "q")
    a("v_and_b32 v8, 15, v9")
    a("v_lshrrev_b32 v10, 4, v9")
    a("v_lshlrev_b32 v10, 9, v10")
    a("v_lshl_add_u32 v12, v8, 4, v10")
    a("v_lshrrev_b32 v11, 3, v8")
    a("v_lshl_add_u32 v11, v11, 8, v10")
    a("v_and_b32 v8, 7, v9")
    a("v_lshl_add_u32 v11, v8, 4, v11")
    a(f"s_lshl_b32 s16, s{S_MT}, 14")
    a("s_lshl_b32 s17, s14, 12")
    a("s_add_u32 s16, s16, s17")
    a(f"s_lshl_b32 s19, s{S_JT}, 18")
    a("s_add_u32 s19, s19, s16")
    a(f"s_add_u32 s19, s19, {hx(WS_Q)}")
    a("s_add_u32 s18, s19, 0x20000")
    a(f"s_lshl_b32 s17, s{S_JT}, 17")
    a("s_add_u32 s17, s17, s16")
    a(f"s_add_u32 s17, s17, {hx(WS_V)}")
    a(f"s_cmp_lt_u32 s{S_JT}, 16")
    a(f"s_cselect_b32 s20, {hx(f2u(C_Q))}, 1.0")
    for P in range(2):
        for db in range(2):
            t = 48 + 4 * (P * 2 + db)
            for b in range(2):
                r = acc(2 * P + b, 4 + db)
                a(f"v_cvt_pk_bf16_f32 v{t+2*b}, v{r}, v{r+1}")
                a(f"v_cvt_pk_bf16_f32 v{t+2*b+1}, v{r+2}, v{r+3}")
            a(f"buffer_store_dwordx4 {vr(t,4)}, v12, s[{SRD_WS}:{SRD_WS+3}], s17 offen offset:{P*2048+db*256}{WT}")
    for hp in range(2):
        for mb in range(4):
            t = 16 + 4 * mb + 16 * hp
            for b in range(2):
                r = acc(mb, 2 * hp + b)
                for e in range(4):
                    a(f"v_mul_f32 v{r+e}, s20, v{r+e}")
                a(f"v_cvt_pk_bf16_f32 v{t+2*b}, v{r}, v{r+1}")
                a(f"v_cvt_pk_bf16_f32 v{t+2*b+1}, v{r+2}, v{r+3}")
            a(f"buffer_store_dwordx4 {vr(t,4)}, v11, s[{SRD_WS}:{SRD_WS+3}], s{19-hp} offen offset:{(mb>>1)*2048+(mb&1)*128}{WT}")
    stamp(a, 5)
    a("s_waitcnt vmcnt(0)")
    stamp_end(a, 1, S_W)
    a("s_endpgm")

    a.label("g1_zwave")
    srd(a, SRD_W, 6, 1024 * 3584 * 2)
    a("s_lshl_b32 s15, s14, 11")
    a(f"s_add_u32 s{S_M0W}, s15, {WZ_OFF}")
    a("v_lshl_add_u32 v16, v13, 2, v11")
    a("v_mul_u32_u24 v16, 224, v16")
    a(f"v_add_u32 v{V_W0}, v15, v16")
    m14, s14 = magic_div(14, 128)
    a("s_mul_i32 s16, s14, 57344")
    a(f"s_mul_i32 s17, s{S_JT}, 224")
    a("s_add_u32 s16, s16, s17")
    a(f"s_and_b32 s21, s{S_JT}, 1")
    for inst, vd in ((0, V_DW0), (1, V_DW1)):
        a(f"v_add_u32 v16, {64*inst}, v9")
        a(f"v_mul_u32_u24 v18, {m14}, v16")
        a(f"v_lshrrev_b32 v18, {s14}, v18")
        a("v_mul_u32_u24 v19, 14, v18")
        a("v_sub_u32 v19, v16, v19")
        a("s_lshl_b32 s22, s21, 1")
        a("v_add_u32 v19, s22, v19")
        a("v_cmp_le_u32 vcc, 14, v19")
        a("v_subrev_u32 v17, 14, v19")
        a("s_nop 0")
        a("v_cndmask_b32 v19, v19, v17, vcc")
        a("v_mul_u32_u24 v18, 7168, v18")
        a("v_lshl_add_u32 v18, v19, 4, v18")
        a("v_add_u32 v18, s16, v18")
        if inst:
            a("v_subrev_u32 v18, 1024, v18")
        a("v_mov_b32 v20, 0x40000000")
        a("v_cmp_le_u32 vcc, 112, v16")
        a("s_nop 1")
        a(f"v_cndmask_b32 v{vd}, v18, v20, vcc")
    a(f"s_cmp_ge_u32 s{S_JT}, 16")
    a("s_cbranch_scc1 g1_z2wave")

    mainloop(a, "z1")
    gelu_all(a, 112, 216)
    stamp(a, 4)
    a("v_lshlrev_b32 v10, 4, v9")
    a("v_lshlrev_b32 v11, 3, v9")
    a(f"s_lshl_b32 s16, s{S_MT}, 4")
    a("s_lshl_b32 s17, s14, 2")
    a("s_add_u32 s16, s16, s17")
    a("s_lshl_b32 s16, s16, 4")
    a(f"s_add_u32 s16, s16, s{S_JT}")
    a("s_mul_i32 s16, s16, 3584")
    a(f"s_add_u32 s16, s16, {hx(WS_Z1)}")
    for mb in range(4):
        t0 = 16 + 16 * mb
        for blk in range(7):
            r = acc(mb, blk)
            a(f"v_cvt_pk_bf16_f32 v{t0+2*blk}, v{r}, v{r+1}")
            a(f"v_cvt_pk_bf16_f32 v{t0+2*blk+1}, v{r+2}, v{r+3}")
        for p in range(3):
            a(f"buffer_store_dwordx4 {vr(t0+4*p,4)}, v10, s[{SRD_WS}:{SRD_WS+3}], s16 offen offset:{p*1024}{WT}")
        a(f"buffer_store_dwordx2 {vr(t0+12,2)}, v11, s[{SRD_WS}:{SRD_WS+3}], s16 offen offset:3072{WT}")
        if mb < 3:
            a(f"s_add_u32 s16, s16, {16*3584}")
    stamp(a, 5)
    a("s_waitcnt vmcnt(0)")
    stamp_end(a, 1, S_W)
    a("s_endpgm")

    a.label("g1_z2wave")
    mainloop(a, "z2")
    gelu_all(a, 112, 216)
    stamp(a, 4)
    for mb in range(4):
        for h in range(2):
            s1 = 16 + mb * 4 + 2 * h; s2 = 32 + mb * 4 + 2 * h
            r0 = acc(mb, 0) + 2 * h; r1 = acc(mb, 1) + 2 * h
            a(f"v_pk_add_f32 {vr(s1,2)}, {vr(r0,2)}, {vr(r1,2)}")
            a(f"v_pk_mul_f32 {vr(s2,2)}, {vr(r0,2)}, {vr(r0,2)}")
    for blk in range(1, 7):
        for mb in range(4):
            for h in range(2):
                s1 = 16 + mb * 4 + 2 * h; s2 = 32 + mb * 4 + 2 * h
                r = acc(mb, blk) + 2 * h
                if blk > 1:
                    a(f"v_pk_add_f32 {vr(s1,2)}, {vr(s1,2)}, {vr(r,2)}")
                a(f"v_pk_fma_f32 {vr(s2,2)}, {vr(r,2)}, {vr(r,2)}, {vr(s2,2)}")
    a("s_nop 1")
    for m in range(2):
        for st in range(2):
            for r in range(4):
                d = 48 + m * 8 + st * 4 + r
                lo = 16 + 16 * st + m * 4 + r
                hi = 16 + 16 * st + (m + 2) * 4 + r
                a(f"v_add_f32_dpp v{d}, v{lo}, v{lo} row_ror:8 row_mask:0xf bank_mask:0x3")
                a(f"v_add_f32_dpp v{d}, v{hi}, v{hi} row_ror:8 row_mask:0xf bank_mask:0xc")
    a("s_nop 1")
    for st in range(2):
        for r in range(4):
            d = 64 + 2 * r + st
            m0 = 48 + st * 4 + r; m1 = 56 + st * 4 + r
            a(f"v_add_f32_dpp v{d}, v{m0}, v{m0} row_ror:12 row_mask:0xf bank_mask:0x5")
            a(f"v_add_f32_dpp v{d}, v{m1}, v{m1} row_ror:4 row_mask:0xf bank_mask:0xa")
    a("s_nop 1")
    for k in range(8):
        a(f"v_add_f32_dpp v{72+k}, v{64+k}, v{64+k} quad_perm:[1,0,3,2] row_mask:0xf bank_mask:0xf")
    a("s_nop 1")
    for k in range(8):
        a(f"v_add_f32_dpp v{64+k}, v{72+k}, v{72+k} quad_perm:[2,3,0,1] row_mask:0xf bank_mask:0xf")
    a("s_mov_b32 s16, 0xfffffffe")
    for k in range(8):
        a(f"v_min_u32 v{64+k}, s16, v{64+k}")
    a(f"s_lshl_b32 s16, s{S_MT}, 2")
    a("s_add_u32 s16, s16, s14")
    a("s_lshl_b32 s16, s16, 13")
    a(f"s_add_u32 s16, s16, {hx(WS_ST)}")
    a(f"s_and_b32 s17, s{S_JT}, 15")
    a("s_lshl_b32 s18, s17, 9")
    a("s_add_u32 s18, s18, s16")
    a("v_bfe_u32 v10, v9, 2, 2")
    a("v_lshrrev_b32 v11, 4, v9")
    a("v_lshlrev_b32 v10, 7, v10")
    a("v_lshl_add_u32 v10, v11, 5, v10")
    a("s_mov_b32 s22, 0x11111111")
    a("s_mov_b32 exec_lo, s22")
    a("s_mov_b32 exec_hi, s22")
    a(f"buffer_store_dwordx4 v[64:67], v10, s[{SRD_WS}:{SRD_WS+3}], s18 offen sc0 sc1")
    a(f"buffer_store_dwordx4 v[68:71], v10, s[{SRD_WS}:{SRD_WS+3}], s18 offen offset:16 sc0 sc1")
    a("s_mov_b64 exec, -1")
    a("v_lshlrev_b32 v10, 3, v9")
    a.label("g1_poll")
    for j in range(16):
        off = j * 512
        if off < 4096:
            a(f"buffer_load_dwordx2 {vr(16+2*j,2)}, v10, s[{SRD_WS}:{SRD_WS+3}], s16 offen offset:{off} sc0 sc1")
        else:
            if off == 4096:
                a("s_add_u32 s19, s16, 4096")
            a(f"buffer_load_dwordx2 {vr(16+2*j,2)}, v10, s[{SRD_WS}:{SRD_WS+3}], s19 offen offset:{off-4096} sc0 sc1")
    a("s_waitcnt vmcnt(0)")
    a("v_max3_u32 v48, v16, v17, v18")
    for k in range(19, 47, 2):
        a(f"v_max3_u32 v48, v48, v{k}, v{k+1}")
    a("v_max_u32 v48, v48, v47")
    a("v_cmp_eq_u32 vcc, -1, v48")
    a("s_nop 4")
    a("s_cbranch_vccz g1_polled")
    a("s_sleep 2")
    a("s_branch g1_poll")
    a.label("g1_polled")
    stamp(a, 6)
    for k in range(1, 16):
        a(f"v_pk_add_f32 v[16:17], v[16:17], {vr(16+2*k,2)}")
    a(f"v_mul_f32 v16, {hx(f2u(1.0/1792))}, v16")
    a(f"v_mul_f32 v17, {hx(f2u(1.0/1792))}, v17")
    a("v_fma_f32 v17, -v16, v16, v17")
    a("v_max_f32 v17, 0, v17")
    a("v_cvt_pk_bf16_f32 v18, v16, v17")
    a("v_lshlrev_b32 v16, 16, v18")
    a("v_and_b32 v17, 0xffff0000, v18")
    a(f"v_add_f32 v17, {hx(f2u(1e-5))}, v17")
    a("v_cvt_pk_bf16_f32 v17, v17, v17")
    a("v_and_b32 v17, 0xffff0000, v17")
    a("v_sqrt_f32 v17, v17")
    a("s_nop 0")
    a("v_cvt_pk_bf16_f32 v17, v17, v17")
    a("v_and_b32 v17, 0xffff0000, v17")
    a("v_rcp_f32 v17, v17")
    a("s_nop 0")
    a("v_mul_f32 v16, v16, v17")
    a("v_sub_f32 v16, 0, v16")
    a("s_lshl_b32 s22, s14, 9")
    a(f"s_add_u32 s22, s22, {3*SLOT}")
    a("v_lshlrev_b32 v11, 2, v9")
    a("v_add_u32 v11, s22, v11")
    a("ds_write_b32 v11, v17")
    a("ds_write_b32 v11, v16 offset:256")
    a("v_lshrrev_b32 v12, 4, v9")
    a("v_lshlrev_b32 v12, 4, v12")
    a("v_add_u32 v12, s22, v12")
    a("s_waitcnt lgkmcnt(0)")
    for mb in range(4):
        a(f"ds_read_b128 {vr(16+4*mb,4)}, v12 offset:{mb*64}")
        a(f"ds_read_b128 {vr(32+4*mb,4)}, v12 offset:{256+mb*64}")
    a(f"s_lshl_b32 s18, s{S_MT}, 3")
    a("s_lshl_b32 s19, s14, 1")
    a("s_add_u32 s18, s18, s19")
    a("s_lshl_b32 s19, s17, 6")
    a("s_add_u32 s18, s18, s19")
    a("s_mul_i32 s18, s18, 7168")
    a(f"s_add_u32 s18, s18, {hx(WS_Z2)}")
    a("s_add_u32 s19, s18, 4096")
    a("v_lshlrev_b32 v10, 4, v9")
    a("s_waitcnt lgkmcnt(0)")
    for P in range(2):
        for blk in range(7):
            t = 48 + 4 * blk + 28 * P
            for b in range(2):
                mb = 2 * P + b
                r = acc(mb, blk)
                for h in range(2):
                    a(f"v_pk_fma_f32 {vr(r+2*h,2)}, {vr(r+2*h,2)}, {vr(16+4*mb+2*h,2)}, {vr(32+4*mb+2*h,2)}")
                a(f"v_cvt_pk_bf16_f32 v{t+2*b}, v{r}, v{r+1}")
                a(f"v_cvt_pk_bf16_f32 v{t+2*b+1}, v{r+2}, v{r+3}")
            so = "s18" if blk < 4 else "s19"
            a(f"buffer_store_dwordx4 {vr(t,4)}, v10, s[{SRD_WS}:{SRD_WS+3}], {so} offen offset:{(blk&3)*1024}{WT}")
        if P == 0:
            a("s_add_u32 s18, s18, 7168")
            a("s_add_u32 s19, s19, 7168")
    stamp(a, 5)
    a("s_waitcnt vmcnt(0)")
    stamp_end(a, 1, S_W)
    a("s_endpgm")
    for l in TAIL: a.raw(l)
    a.label("g1_done")
    a("s_endpgm")
    return name, kd(name, 256, 64), f"grid=(256,1,1) block=(512,1,1) lds={SLOT*NSLOT}"
```

```python
from common import *
import os

LDS2 = 81920
EXP = os.environ.get("EXP", "").split(",")
A_KT = 8
A_HALF = A_KT * 2048
A_SLOT = 2 * A_HALF
A_FLAG = 2 * A_SLOT
AV_LANE, AV_KA, AV_K0, AV_D, AV_CS = 1, 2, 4, 6, 7
QF = [8, 16]
NM = [24, 40]
SB = [56, 72]
PB = [88, 96]
OA = [104, 120]
LA = [136, 140]
KF = [144, 152]
VF = [160, 168]
ONE = 176
IDX = 180
AT = 184
CPR = 192
S_W = 3
AS_RD, AS_K, AS_V, AS_IT, AS_MODE, AS_M0, AS_H, AS_QB, AS_KB = 24, 26, 27, 28, 29, 30, 31, 32, 33
AS_C0, AS_C1, AS_D0, AS_D1, AS_CO = 52, 53, 54, 55, 56
SRD_WS, SRD_WO, SRD_WOUT, SRD_B = 36, 40, 44, 40

def a_qk(q, kb):
    s = SB[q]
    return [f"v_mfma_f32_32x32x16_bf16 {vr(s,16)}, {vr(KF[kb],4)}, {vr(QF[q],4)}, {vr(NM[q],16)}",
            f"v_mfma_f32_32x32x16_bf16 {vr(s,16)}, {vr(KF[kb]+4,4)}, {vr(QF[q]+4,4)}, {vr(s,16)}"]
def a_pv(q, vb):
    o = OA[q]; p = PB[q]
    return [f"v_mfma_f32_32x32x16_bf16 {vr(o,16)}, {vr(VF[vb],4)}, {vr(p,4)}, {vr(o,16)}",
            f"v_mfma_f32_32x32x16_bf16 {vr(o,16)}, {vr(VF[vb]+4,4)}, {vr(p+4,4)}, {vr(o,16)}",
            f"v_smfmac_f32_16x16x64_bf16 {vr(LA[q],4)}, {vr(ONE,4)}, {vr(p,8)}, v{IDX}"]
def a_exp(q):
    s = SB[q]; p = PB[q]
    e = [f"v_exp_f32 v{s+i}, v{s+i}" for i in range(16)]
    c = [f"v_cvt_pk_bf16_f32 v{p+k}, v{s+2*k}, v{s+2*k+1}" for k in range(8)]
    out = e[0:4]
    for k in range(6):
        out += [c[k]] + e[4 + 2 * k: 6 + 2 * k]
    return out + [c[6], c[7]]
def a_reads(kt, buf, k=True):
    r = []
    if k:
        r += [f"ds_read_b128 {vr(KF[buf]+4*t,4)}, v{AV_KA} offset:{kt*2048+t*1024}" for t in range(2)]
    r += [f"ds_read_b128 {vr(VF[buf]+4*t,4)}, v{AV_KA} offset:{A_HALF+kt*2048+t*1024}" for t in range(2)]
    return r
def a_dma(wr):
    g = []
    for part, sreg in ((0, AS_K), (1, AS_V)):
        for k in range(4):
            l = [f"buffer_load_dwordx4 v{AV_D}, s[{SRD_WS}:{SRD_WS+3}], s{sreg} offen offset:{k*1024} lds"]
            if k == 0:
                l = [f"s_add_u32 m0, {wr}, s{AS_M0}" if part == 0 else f"s_add_u32 m0, m0, {A_HALF}", "s_nop 0"] + l
            if k == 3:
                l.append(f"s_add_u32 s{sreg}, s{sreg}, {A_HALF}")
            g.append(l)
    return g
def a_cp(k, store):
    r = vr(CPR + 4 * k, 4)
    if store:
        so = f"s{AS_D0}" if k < 2 else f"s{AS_D1}"
        return [f"buffer_store_dwordx4 {r}, v{AV_K0}, s[{SRD_WS}:{SRD_WS+3}], {so} offen offset:{(k if k < 2 else k-2)*1024}"]
    if k < 2:
        return [f"buffer_load_dwordx4 {r}, v{AV_CS}, s[{SRD_WO}:{SRD_WO+3}], s{AS_C0} offen", f"s_add_u32 s{AS_C0}, s{AS_C0}, 16384"]
    return [f"buffer_load_dwordx4 {r}, v{AV_CS}, s[{SRD_WOUT}:{SRD_WOUT+3}], s{AS_C1} offen", f"s_add_u32 s{AS_C1}, s{AS_C1}, 16384"]

def a_slot(q_exp, q_qk, kb, q_pv, vb, extra, do_exp=True, do_qk=True, do_pv=True):
    qk = a_qk(q_qk, kb); pv = a_pv(q_pv, vb)
    if not do_exp:
        return pv
    pos = {}
    if do_qk: pos.update({-1: [qk[0]], 3: [qk[1]]})
    if do_pv: pos.update({8: [pv[0]], 13: [pv[1]], 18: [pv[2]]})
    for k, l in extra.items():
        pos[k] = pos.get(k, []) + l
    return place(a_exp(q_exp), pos)

def gen_attn(a):
    a.label("p2_attn")
    a("s_and_b32 s10, s2, 7")
    a("s_bfe_u32 s11, s2, 0x50003")
    a("s_lshl_b32 s10, s10, 2")
    a("s_lshr_b32 s12, s11, 3")
    a(f"s_add_u32 s{AS_H}, s10, s12")
    a(f"s_and_b32 s{AS_QB}, s11, 7")
    a(f"v_lshlrev_b32 v{AV_K0}, 4, v{AV_LANE}")
    a(f"s_lshl_b32 s{AS_M0}, s{S_W}, 12")
    a(f"v_add_u32 v{AV_D}, s{AS_M0}, v{AV_K0}")
    a(f"s_lshl_b32 s{AS_KB}, s{AS_H}, 17")
    a(f"s_add_u32 s{AS_KB}, s{AS_KB}, {hx(WS_K)}")
    a(f"s_lshl_b32 s12, s{AS_QB}, 14")
    a(f"s_add_u32 s12, s12, s{AS_M0}")
    a(f"s_add_u32 s12, s12, s{AS_KB}")
    a(f"s_sub_u32 s12, s12, {hx(WS_K-WS_Q)}")
    a(f"s_mov_b32 s{AS_MODE}, 1")
    a("s_waitcnt lgkmcnt(0)")
    srd(a, SRD_WS, 8, WS_END)
    for q in range(2):
        for t in range(2):
            a(f"buffer_load_dwordx4 {vr(QF[q]+4*t,4)}, v{AV_K0}, s[{SRD_WS}:{SRD_WS+3}], s12 offen offset:{q*2048+t*1024}")
    a.label("p2_restart")
    for t in range(2):
        a(f"buffer_load_dwordx4 {vr(KF[1]+4*t,4)}, v{AV_K0}, s[{SRD_WS}:{SRD_WS+3}], s{AS_KB} offen offset:{t*1024}")
    a(f"s_add_u32 s{AS_K}, s{AS_KB}, 2048")
    a(f"s_add_u32 s{AS_V}, s{AS_KB}, {hx(WS_V-WS_K)}")
    for g in a_dma("0"): a.extend(g)
    a(f"s_cmp_lg_u32 s{AS_MODE}, 1")
    a("s_cbranch_scc1 p2_nosetup")
    a(f"v_and_b32 v{AT}, 2, v{AV_LANE}")
    a(f"v_cmp_eq_u32 vcc, 0, v{AT}")
    a(f"v_mov_b32 v{AT+1}, 0x3f803f80")
    a(f"v_and_b32 v{AT}, 1, v{AV_LANE}")
    a(f"v_cndmask_b32 v{ONE}, 0, v{AT+1}, vcc")
    a(f"v_cndmask_b32 v{ONE+1}, 0, v{AT+1}, vcc")
    a(f"v_xor_b32 v{ONE+2}, v{ONE}, v{AT+1}")
    a(f"v_xor_b32 v{ONE+3}, v{ONE}, v{AT+1}")
    a(f"v_mul_u32_u24 v{IDX}, 0xaaaa, v{AT}")
    a(f"v_add_u32 v{IDX}, 0x4444, v{IDX}")
    srd(a, SRD_WO, 16, 1024 * 1024 * 2)
    srd(a, SRD_WOUT, 18, 1792 * 1024 * 2)
    a(f"v_lshrrev_b32 v{AT}, 3, v{AV_LANE}")
    a(f"v_bfe_u32 v{AT+1}, v{AV_LANE}, 1, 2")
    a(f"v_bfe_u32 v{AT+2}, v{AV_LANE}, 4, 2")
    a(f"v_xor_b32 v{AT+1}, v{AT+1}, v{AT+2}")
    a(f"v_and_b32 v{AT+2}, 1, v{AV_LANE}")
    a(f"v_lshlrev_b32 v{AT+2}, 4, v{AT+2}")
    a(f"v_lshl_add_u32 v{AT+1}, v{AT+1}, 5, v{AT+2}")
    a(f"v_lshl_add_u32 v{AV_CS}, v{AT}, 11, v{AT+1}")
    a("s_lshl_b32 s12, s2, 2")
    a(f"s_add_u32 s12, s12, s{S_W}")
    a("s_lshr_b32 s13, s12, 6")
    a("s_and_b32 s15, s12, 63")
    a(f"s_lshl_b32 s{AS_C0}, s15, 15")
    a("s_lshl_b32 s20, s13, 7")
    a(f"s_add_u32 s{AS_C0}, s{AS_C0}, s20")
    a(f"s_mul_i32 s{AS_D0}, s13, {WI_NT}")
    a("s_lshl_b32 s20, s15, 11")
    a(f"s_add_u32 s{AS_D0}, s{AS_D0}, s20")
    a(f"s_add_u32 s{AS_D0}, s{AS_D0}, {hx(WS_WI)}")
    md, sh = magic_div(56, 1024)
    a(f"s_mul_i32 s13, s12, {md}")
    a(f"s_lshr_b32 s13, s13, {sh}")
    a("s_mul_i32 s15, s13, 56")
    a("s_sub_u32 s15, s12, s15")
    a(f"s_lshl_b32 s{AS_C1}, s15, 16")
    a("s_lshl_b32 s20, s13, 7")
    a(f"s_add_u32 s{AS_C1}, s{AS_C1}, s20")
    a(f"s_mul_i32 s{AS_D1}, s13, {WI_NT}")
    a("s_lshl_b32 s20, s15, 12")
    a(f"s_add_u32 s{AS_D1}, s{AS_D1}, s20")
    a(f"s_add_u32 s{AS_D1}, s{AS_D1}, {hx(WS_WI + 16*8192)}")
    a("s_cmp_lt_u32 s12, 896")
    a(f"s_cselect_b32 s{AS_D1}, s{AS_D1}, 0x40000000")
    a(f"s_cselect_b32 s{AS_C1}, s{AS_C1}, 0x40000000")
    a(f"s_mov_b32 s{AS_CO}, 0")
    a.label("p2_nosetup")
    a(f"v_mov_b32 v{AT}, {A_FLAG}")
    a(f"v_mov_b32 v{AT+1}, 0")
    a(f"ds_write_b32 v{AT}, v{AT+1}")
    for q in range(2):
        for r in range(16): a(f"v_mov_b32 v{OA[q]+r}, 0")
        for r in range(4): a(f"v_mov_b32 v{LA[q]+r}, 0")
    a(f"v_mov_b32 v{AT+4}, 0xff800000")
    a(f"v_mov_b32 v{AT+5}, 0xff800000")
    a(f"s_mov_b32 s{AS_IT}, s{AS_MODE}")
    a(f"s_mov_b32 s12, s{AS_KB}")
    a("s_waitcnt vmcnt(8)")
    stamp(a, 1)
    a.label("p2_maxloop")
    for q in range(2):
        s = SB[q]
        a(f"v_mfma_f32_32x32x16_bf16 {vr(s,16)}, {vr(KF[1],4)}, {vr(QF[q],4)}, 0")
        a(f"v_mfma_f32_32x32x16_bf16 {vr(s,16)}, {vr(KF[1]+4,4)}, {vr(QF[q]+4,4)}, {vr(s,16)}")
    a("s_nop 15")
    for q in range(2):
        s = SB[q]
        for k in range(8):
            a(f"v_max3_f32 v{AT+4+q}, v{s+2*k}, v{s+2*k+1}, v{AT+4+q}")
    a(f"s_sub_u32 s{AS_IT}, s{AS_IT}, 1")
    a(f"s_cmp_eq_u32 s{AS_IT}, 0")
    a("s_cbranch_scc1 p2_maxdone")
    a("s_add_u32 s12, s12, 2048")
    for t in range(2):
        a(f"buffer_load_dwordx4 {vr(KF[1]+4*t,4)}, v{AV_K0}, s[{SRD_WS}:{SRD_WS+3}], s12 offen offset:{t*1024}")
    a("s_waitcnt vmcnt(0)")
    a("s_branch p2_maxloop")
    a.label("p2_maxdone")
    a(f"s_cmp_eq_u32 s{AS_MODE}, 1")
    a("s_cbranch_scc1 p2_k0ok")
    for t in range(2):
        a(f"buffer_load_dwordx4 {vr(KF[1]+4*t,4)}, v{AV_K0}, s[{SRD_WS}:{SRD_WS+3}], s{AS_KB} offen offset:{t*1024}")
    a("s_waitcnt vmcnt(0)")
    a.label("p2_k0ok")
    for q in range(2):
        m = AT + 4 + q
        a(f"v_mov_b32 v{AT+6}, v{m}")
        a("s_nop 1")
        a(f"v_permlane32_swap_b32 v{m}, v{AT+6}")
        a("s_nop 1")
        a(f"v_max_f32 v{m}, v{m}, v{AT+6}")
        for r in range(16):
            a(f"v_sub_f32 v{NM[q]+r}, 0, v{m}")
    a("s_nop 1")
    a.extend(a_qk(0, 1))
    a(f"s_mov_b32 s{AS_RD}, 0")
    a(f"v_mov_b32 v{AV_KA}, v{AV_K0}")
    a("s_waitcnt vmcnt(0) lgkmcnt(0)")
    a("s_barrier")
    ex = {}
    for p, r in zip((0, 1, 2, 4), a_reads(0, 0)): ex[p] = [r]
    for p, g in zip((6, 8, 10, 12, 14, 16, 18, 20), a_dma(str(A_SLOT))): ex[p] = g
    a("s_nop 3")
    a.extend(a_slot(0, 1, 1, 1, 1, ex, do_pv=False))
    a("s_waitcnt lgkmcnt(0)")
    a(f"s_mov_b32 s{AS_IT}, 7")
    stamp(a, 2)
    def stage(last):
        for u in range(A_KT):
            b = u & 1
            fin = last and u == A_KT - 1
            ex1 = {}; ex2 = {}
            if not fin:
                rd = a_reads((u + 1) % A_KT, b ^ 1, k=not (last and u == A_KT - 2))
                for p, r in zip((3, 8, 18, 18), rd):
                    ex1.setdefault(p, []).append(r)
                ex2[18] = ["s_waitcnt lgkmcnt(0)"]
            if u == A_KT - 2 and not last:
                ex2[18] = ["s_waitcnt vmcnt(0) lgkmcnt(0)"] + ([] if "anobar" in EXP else ["s_barrier"])
                ex2[13] = [f"s_mov_b32 s25, s{AS_RD}"]
                ex2[8] = []
            if u == A_KT - 1 and not last:
                ex1[-1] = [f"s_xor_b32 s{AS_RD}, s{AS_RD}, {A_SLOT}"]
                ex1[1] = [f"v_add_u32 v{AV_KA}, s{AS_RD}, v{AV_K0}"]
                d = a_dma("s25")
                d[0] = [x for x in d[0] if x != "s_nop 0"]; d[4] = [x for x in d[4] if x != "s_nop 0"]
                ex1[-1].append(d[0].pop(0))
                ex1[13] = d[0] + d[1]
                ex2[-1] = d[2] + d[3] + [d[4].pop(0)]
                ex2[3] = d[4] + d[5]
                ex2[8] = d[6]
                ex2[13] = d[7]
            a.extend(xfilter(a_slot(1, 0, b, 0, b, ex1, do_qk=not fin), "a"))
            if fin: a("s_nop 0")
            a.extend(xfilter(a_slot(0, 1, b, 1, b, ex2, do_exp=not fin), "a"))
    a.raw(".p2align 3")
    a.label("p2_aloop")
    stage(False)
    a(f"s_add_u32 s12, s{AS_IT}, s{AS_CO}")
    tail = []
    rare_block(a, "p2_cp", "s12", [(7, a_cp(0, False) + a_cp(1, False)), (6, a_cp(2, False) + a_cp(3, False)), (5, a_cp(4, False) + a_cp(5, False)),
                                   (3, a_cp(0, True) + a_cp(1, True)), (2, a_cp(2, True) + a_cp(3, True)), (1, a_cp(4, True) + a_cp(5, True))], tail)
    a(f"s_sub_u32 s{AS_IT}, s{AS_IT}, 1")
    a(f"s_cmp_lg_u32 s{AS_IT}, 0")
    a("s_cbranch_scc1 p2_aloop")
    stage(True)
    stamp(a, 3)
    a(f"v_and_b32 v{AT}, 16, v{AV_LANE}")
    a(f"v_cmp_eq_u32 vcc, 0, v{AT}")
    a("s_nop 7")
    for q in range(2):
        l = LA[q]
        a(f"v_add_f32 v{l}, v{l}, v{l+1}")
        a(f"v_add_f32 v{l+2}, v{l+2}, v{l+3}")
        a(f"v_cndmask_b32 v{l}, v{l+2}, v{l}, vcc")
    a(f"s_cmp_lg_u32 s{AS_MODE}, 1")
    a("s_cbranch_scc1 p2_afin")
    a(f"v_add_f32 v{AT}, v{LA[0]}, v{LA[1]}")
    a(f"s_mov_b32 s12, {hx(f2u(2.0**60))}")
    a(f"v_cmp_ngt_f32 vcc, s12, v{AT}")
    a("s_nop 4")
    a("s_cbranch_vccz p2_nobad")
    a(f"v_mov_b32 v{AT}, {A_FLAG}")
    a(f"v_mov_b32 v{AT+1}, 1")
    a(f"ds_write_b32 v{AT}, v{AT+1}")
    a.label("p2_nobad")
    a("s_waitcnt lgkmcnt(0)")
    a("s_barrier")
    a(f"v_mov_b32 v{AT}, {A_FLAG}")
    a(f"ds_read_b32 v{AT+1}, v{AT}")
    a("s_waitcnt lgkmcnt(0)")
    a(f"v_readfirstlane_b32 s12, v{AT+1}")
    a("s_cmp_eq_u32 s12, 0")
    a("s_cbranch_scc1 p2_afin")
    a(f"s_mov_b32 s{AS_MODE}, 64")
    a(f"s_mov_b32 s{AS_CO}, 16")
    a("s_waitcnt vmcnt(0)")
    a("s_barrier")
    a("s_branch p2_restart")
    a.label("p2_afin")
    for q in range(2):
        a(f"v_rcp_f32 v{LA[q]}, v{LA[q]}")
    a(f"v_bfe_u32 v{AT}, v{AV_LANE}, 3, 1")
    a(f"v_lshlrev_b32 v{AT}, 10, v{AT}")
    a(f"v_lshrrev_b32 v{AT+1}, 4, v{AV_LANE}")
    a(f"v_lshl_add_u32 v{AT}, v{AT+1}, 7, v{AT}")
    a(f"v_and_b32 v{AT+1}, 7, v{AV_LANE}")
    a(f"v_lshl_add_u32 v{AT}, v{AT+1}, 4, v{AT}")
    a(f"s_lshl_b32 s12, s{AS_QB}, 1")
    a(f"s_lshr_b32 s13, s{S_W}, 1")
    a("s_add_u32 s12, s12, s13")
    a(f"s_mul_i32 s12, s12, {OU_MT}")
    a(f"s_lshl_b32 s13, s{AS_H}, 13")
    a("s_add_u32 s12, s12, s13")
    a(f"s_and_b32 s13, s{S_W}, 1")
    a("s_lshl_b32 s13, s13, 12")
    a("s_add_u32 s12, s12, s13")
    a(f"s_add_u32 s12, s12, {hx(WS_OU)}")
    for q in range(2):
        o = OA[q]
        for r in range(16):
            a(f"v_mul_f32 v{o+r}, v{o+r}, v{LA[q]}")
        t = SB[q]
        for ch in range(2):
            a(f"v_cvt_pk_bf16_f32 v{t+4*ch}, v{o+4*ch}, v{o+4*ch+1}")
            a(f"v_cvt_pk_bf16_f32 v{t+4*ch+1}, v{o+4*ch+2}, v{o+4*ch+3}")
            a(f"v_cvt_pk_bf16_f32 v{t+4*ch+2}, v{o+8+4*ch}, v{o+8+4*ch+1}")
            a(f"v_cvt_pk_bf16_f32 v{t+4*ch+3}, v{o+8+4*ch+2}, v{o+8+4*ch+3}")
            a(f"buffer_store_dwordx4 {vr(t+4*ch,4)}, v{AT}, s[{SRD_WS}:{SRD_WS+3}], s12 offen offset:{q*2048+ch*512}{WT}")
    stamp(a, 5)
    a("s_waitcnt vmcnt(0)")
    stamp_end(a, 2, S_W, 20)
    a("s_endpgm")
    for l in tail: a.raw(l)

G_HALF = 7168
G_SLOT = 2 * G_HALF
GV_A0, GV_D, GV_W1, GV_BO, GV_L8 = 2, 4, 6, 7, 8
AF = 12
WB = [40, 56, 72, 88]
GACC = 104
GT = 160
Z1R = [168, 184]
GS_KA, GS_KW, GS_IT, GS_TI, GS_J = 26, 27, 28, 31, 32
GS_M0 = 44

def g_dma(slot):
    ld = lambda off: f"buffer_load_dwordx4 v{GV_D}, s[{SRD_WS}:{SRD_WS+3}], s{GS_KA} offen offset:{off} lds"
    return [[f"s_mov_b32 m0, s{GS_M0+slot}", "s_nop 0", ld(0)], [ld(1024)], [ld(2048)],
            ["s_mov_b32 exec_hi, 0", ld(3072), "s_mov_b32 exec_hi, -1", f"s_add_u32 s{GS_KA}, s{GS_KA}, {G_SLOT}"]]
def g_wloads(wb):
    r = []
    for tb in range(2):
        for phi in range(2):
            r.append([f"buffer_load_dwordx4 {vr(WB[wb]+tb*8+phi*4,4)}, v{GV_A0 if tb == 0 else GV_W1}, s[{SRD_WS}:{SRD_WS+3}], s{GS_KW} offen offset:{phi*1024}"])
    r[-1].append(f"s_add_u32 s{GS_KW}, s{GS_KW}, 2048")
    return r
def g_z1loads(tb):
    so = "s14" if tb == 0 else "s15"
    z = Z1R[tb]
    r = [[f"buffer_load_dwordx4 {vr(z+4*p,4)}, v{GV_A0}, s[{SRD_WS}:{SRD_WS+3}], {so} offen offset:{p*1024}"] for p in range(3)]
    r.append([f"buffer_load_dwordx2 {vr(z+12,2)}, v{GV_L8}, s[{SRD_WS}:{SRD_WS+3}], {so} offen offset:3072",
              f"buffer_load_ushort v{z+14}, v{GV_BO}, s[{SRD_B}:{SRD_B+3}], 0 offen offset:{tb*8}"])
    return r

def g_sched():
    sim = VmSim()
    sim.issue(("D", 0), 4); sim.issue(("W", 0), 4); sim.issue(("D", 1), 4); sim.issue(("W", 1), 4); sim.issue(("D", 2), 4); sim.issue(("W", 2), 4)
    first = sim.need(("W", 0))
    vm = {}
    for s in range(64):
        i = s // 2
        if s % 2 == 0:
            vm[s] = None
            if i + 3 <= 31: sim.issue(("W", i + 3), 4)
        else:
            vm[s] = sim.need(("D", i + 1), ("W", i + 1)) if s < 63 else None
            if i + 3 <= 31: sim.issue(("D", i + 3), 4)
        if s in (59, 60): sim.issue("Z", 5)
    return first, vm

def g_step(a, s, vm):
    phi = s & 1; i = s // 2
    last = s == 63
    if vm is not None:
        a(f"s_waitcnt vmcnt({vm})")
        if "gnobar" not in EXP: a("s_barrier")
    fill = []
    if i + 3 <= 31:
        fill += g_dma((i + 3) % 4) if phi else g_wloads((i + 3) % 4)
    if s in (59, 60): fill += g_z1loads(s - 59)
    nxt = (((s + 1) // 2) % 4) * G_SLOT + ((s + 1) & 1) * G_HALF
    for be in range(7):
        a(f"s_waitcnt lgkmcnt({6 - be if last else 6})")
        for tb in range(2):
            c = GACC + (be * 2 + tb) * 4
            a(f"v_mfma_f32_16x16x32_bf16 {vr(c,4)}, {vr(AF+4*be,4)}, {vr(WB[i%4]+tb*8+phi*4,4)}, {vr(c,4)}")
        if not last:
            a(f"ds_read_b128 {vr(AF+4*be,4)}, v{GV_A0} offset:{nxt+be*1024}")
        if be < len(fill):
            a.extend(fill[be])

def gen_gemm2(a):
    a.label("p2_gemm2")
    a("s_setprio 3")
    a("s_and_b32 s10, s2, 7")
    a("s_bfe_u32 s11, s2, 0x50003")
    a("s_and_b32 s12, s10, 3")
    a("s_lshl_b32 s12, s12, 2")
    a("s_lshr_b32 s13, s11, 3")
    a(f"s_add_u32 s{GS_TI}, s12, s13")
    a("s_lshr_b32 s12, s10, 2")
    a("s_lshl_b32 s12, s12, 3")
    a("s_and_b32 s13, s11, 7")
    a(f"s_add_u32 s{GS_J}, s12, s13")
    a(f"v_lshlrev_b32 v{GV_A0}, 4, v{AV_LANE}")
    a(f"s_mul_i32 s{GS_M0}, s{S_W}, 3584")
    for k in range(1, 4):
        a(f"s_add_u32 s{GS_M0+k}, s{GS_M0}, {k*G_SLOT}")
    a(f"v_add_u32 v{GV_D}, s{GS_M0}, v{GV_A0}")
    a(f"s_mul_i32 s{GS_KA}, s{GS_J}, {64*7168}")
    a(f"s_add_u32 s{GS_KA}, s{GS_KA}, {hx(WS_Z2)}")
    a(f"s_lshl_b32 s12, s{GS_TI}, 2")
    a(f"s_add_u32 s12, s12, s{S_W}")
    a(f"v_add_u32 v{GV_W1}, 0x10000, v{GV_A0}")
    a(f"s_lshl_b32 s{GS_KW}, s12, 17")
    a(f"s_add_u32 s{GS_KW}, s{GS_KW}, {hx(WS_SPI)}")
    a("s_waitcnt lgkmcnt(0)")
    srd(a, SRD_WS, 8, WS_END)
    first, vm = g_sched()
    for k in range(3):
        for g in g_dma(k): a.extend(g)
        for g in g_wloads(k): a.extend(g)
    srd(a, SRD_B, 6, 4096)
    a("s_lshl_b32 s13, s12, 5")
    a(f"v_bfe_u32 v{GT}, v{AV_LANE}, 2, 2")
    a(f"v_lshlrev_b32 v{GT}, 3, v{GT}")
    a(f"v_and_b32 v{GT+1}, 3, v{AV_LANE}")
    a(f"v_add3_u32 v{GT}, v{GT}, v{GT+1}, s13")
    a(f"v_lshlrev_b32 v{GV_BO}, 1, v{GT}")
    a(f"v_lshlrev_b32 v{GV_L8}, 3, v{AV_LANE}")
    a("s_lshl_b32 s14, s12, 5")
    a(f"s_add_u32 s14, s14, s{GS_J}")
    a("s_mul_i32 s14, s14, 3584")
    a(f"s_add_u32 s14, s14, {hx(WS_Z1)}")
    a(f"s_add_u32 s15, s14, {16*3584}")
    for r in range(56): a(f"v_mov_b32 v{GACC+r}, 0")
    a("s_setprio 0")
    stamp(a, 1)
    a(f"s_waitcnt vmcnt({first})")
    a("s_barrier")
    stamp(a, 2)
    for be in range(7):
        a(f"ds_read_b128 {vr(AF+4*be,4)}, v{GV_A0} offset:{be*1024}")
    for s in range(56):
        assert vm[s] == vm[s % 8], (s, vm)
    a(f"s_mov_b32 s{GS_IT}, 7")
    a.raw(".p2align 3")
    a.label("p2_gloop")
    for s in range(8):
        g_step(a, s, vm[s])
    a(f"s_sub_u32 s{GS_IT}, s{GS_IT}, 1")
    a(f"s_cmp_lg_u32 s{GS_IT}, 0")
    a("s_cbranch_scc1 p2_gloop")
    for s in range(56, 64):
        g_step(a, s, vm[s])
    stamp(a, 3)
    a(f"s_and_b32 s16, s{GS_J}, 1")
    a(f"s_mul_i32 s17, s{GS_J}, 7")
    a("s_add_u32 s17, s17, s16")
    a("s_lshr_b32 s17, s17, 1")
    a("s_add_u32 s17, s17, 32")
    a("s_lshl_b32 s17, s17, 13")
    a(f"s_mul_i32 s18, s{GS_TI}, {OU_MT}")
    a("s_add_u32 s17, s17, s18")
    a(f"s_lshl_b32 s18, s{S_W}, 11")
    a("s_add_u32 s17, s17, s18")
    a(f"s_add_u32 s17, s17, {hx(WS_OU)}")
    a("s_add_u32 s18, s17, 8192")
    a("s_add_u32 s19, s17, 16384")
    a(f"s_mov_b32 s20, {3*8192}")
    a("s_cmp_eq_u32 s16, 0")
    a(f"s_cselect_b32 s20, s20, {hx(-8192+8)}")
    a("s_add_u32 s20, s20, s17")
    a("s_waitcnt vmcnt(0)")
    for tb in range(2):
        a(f"v_lshlrev_b32 v{Z1R[tb]+14}, 16, v{Z1R[tb]+14}")
    for tb in range(2):
        for be in range(7):
            c = GACC + (be * 2 + tb) * 4
            z = Z1R[tb] + 2 * be
            t = GT
            for e in range(4):
                a(f"v_add_f32 v{c+e}, v{c+e}, v{Z1R[tb]+14}")
            a(f"v_lshlrev_b32 v{t}, 16, v{z}")
            a(f"v_and_b32 v{t+1}, 0xffff0000, v{z}")
            a(f"v_lshlrev_b32 v{t+2}, 16, v{z+1}")
            a(f"v_and_b32 v{t+3}, 0xffff0000, v{z+1}")
            for e in range(4):
                a(f"v_mul_f32 v{c+e}, v{c+e}, v{t+e}")
            d = WB[tb] + 2 * be
            a(f"v_cvt_pk_bf16_f32 v{d}, v{c}, v{c+1}")
            a(f"v_cvt_pk_bf16_f32 v{d+1}, v{c+2}, v{c+3}")
        for p in range(3):
            a(f"buffer_store_dwordx4 {vr(WB[tb]+4*p,4)}, v{GV_A0}, s[{SRD_WS}:{SRD_WS+3}], s{17+p} offen offset:{tb*1024}{WT}")
        a(f"buffer_store_dwordx2 {vr(WB[tb]+12,2)}, v{GV_A0}, s[{SRD_WS}:{SRD_WS+3}], s20 offen offset:{tb*1024}{WT}")
    stamp(a, 5)
    a("s_waitcnt vmcnt(0)")
    stamp_end(a, 2, S_W, 20)
    a("s_endpgm")

def gen_phase2(a):
    name = "phase2_kernel"
    khead(a, name)
    a("s_cmp_ge_u32 s2, 512")
    a("s_cbranch_scc1 p2_done")
    stamp_start(a)
    code_warm(a, name, "p2_done", 220, 58)
    a("s_load_dwordx2 s[6:7], s[0:1], 48")
    a("s_load_dwordx2 s[8:9], s[0:1], 80")
    a("s_load_dwordx2 s[16:17], s[0:1], 16")
    a("s_load_dwordx2 s[18:19], s[0:1], 56")
    a("v_lshrrev_b32 v8, 6, v0")
    a(f"v_and_b32 v{AV_LANE}, 63, v0")
    a(f"v_readfirstlane_b32 s{S_W}, v8")
    a("s_cmp_ge_u32 s2, 256")
    mode = os.environ.get("P2MODE", "")
    if mode == "attn":
        a("s_cbranch_scc1 p2_done")
    elif mode == "gemm":
        a("s_cbranch_scc0 p2_done")
        a("s_branch p2_gemm2")
    else:
        a("s_cbranch_scc1 p2_gemm2")
    gen_attn(a)
    gen_gemm2(a)
    a.label("p2_done")
    a("s_endpgm")
    return name, kd(name, 224, 64), f"grid=(512,1,1) block=(256,1,1) lds={LDS2}"
```

```python
from common import *
import math, os

PFW = 'k3pf' in XP
PF0 = int(os.environ.get('PF0', '7'))
SLOT = 24576
NSLOT = 6
W_OFF = 16384
NST = 44
V_LANE, V_A0, V_A, V_W0a, V_W0b, V_Wa, V_Wb, V_DA, V_DW = 1, 2, 3, 4, 5, 6, 7, 8, 9
FR = [16, 48]
ACC = [80, 96]
XR = 112
T = 120
S_W = 3
S_MT, S_NT, S_RD, S_WR, S_KA, S_KW, S_M0A, S_M0W, S_IT = 24, 25, 26, 27, 28, 29, 30, 31, 32
SRD_WS, SRD_WO, SRD_WOUT, SRD_X, SRD_OUT = 36, 40, 44, 48, 52

def mf(buf, accs):
    r = []
    for kk in range(2):
        for mb in range(2):
            for b in range(2):
                d = ACC[accs] + (mb * 2 + b) * 4
                r.append(f"v_mfma_f32_16x16x32_bf16 {vr(d,4)}, {vr(FR[buf]+16+(kk*2+b)*4,4)}, {vr(FR[buf]+(kk*2+mb)*4,4)}, {vr(d,4)}")
    return r
def reads(buf):
    r = []
    for kk in range(2):
        for mb in range(2):
            r.append(f"ds_read_b128 {vr(FR[buf]+(kk*2+mb)*4,4)}, v{V_A} offset:{kk*8192+mb*1024}")
        for b in range(2):
            for rho in range(2):
                r.append(f"ds_read_b64_tr_b16 {vr(FR[buf]+16+(kk*2+b)*4+2*rho,2)}, v{V_Wa+b} offset:{W_OFF+kk*4096+rho*2048}")
    return r
def dma():
    return [[f"s_add_u32 m0, s{S_WR}, s{S_M0A}", "s_nop 0",
             f"buffer_load_dwordx4 v{V_DA}, s[{SRD_WS}:{SRD_WS+3}], s{S_KA} offen lds"],
            [f"buffer_load_dwordx4 v{V_DA}, s[{SRD_WS}:{SRD_WS+3}], s{S_KA} offen offset:1024 lds",
             f"s_add_u32 s{S_KA}, s{S_KA}, 16384"],
            [f"s_add_u32 m0, s{S_WR}, s{S_M0W}", "s_nop 0",
             f"buffer_load_dwordx4 v{V_DW}, s[{SRD_WS}:{SRD_WS+3}], s{S_KW} offen lds",
             f"s_add_u32 s{S_KW}, s{S_KW}, 8192"]]
def adv():
    return [f"s_mov_b32 s{S_WR}, s{S_RD}",
            f"s_add_u32 s{S_RD}, s{S_RD}, {SLOT}",
            f"s_cmp_eq_u32 s{S_RD}, {SLOT*NSLOT}",
            f"s_cselect_b32 s{S_RD}, 0, s{S_RD}",
            f"v_add_u32 v{V_A}, s{S_RD}, v{V_A0}",
            f"v_add_u32 v{V_Wa}, s{S_RD}, v{V_W0a}",
            f"v_add_u32 v{V_Wb}, s{S_RD}, v{V_W0b}"]

def step(a, buf, accs, vm, do_read, dmas):
    a(f"s_waitcnt vmcnt({vm}) lgkmcnt(0)" if vm is not None else "s_waitcnt lgkmcnt(0)")
    if do_read and "k3nobar" not in XP:
        a("s_barrier")
    sl = {}
    gs = []
    for d in dmas:
        g = dma()
        if d is not None:
            g[0] = [f"s_mov_b32 s{S_WR}, {d}"] + g[0]
        gs += g
    for p, g in zip((-1, 0, 1, 2, 3, 4) if ('k3spread' not in XP or len(gs) > 3) else (0, 3, 5), gs):
        sl.setdefault(p, []).extend(g)
    if do_read:
        rd = reads(buf ^ 1)
        for k, r in enumerate(rd):
            sl.setdefault(min(k // 2, 5), []).append(r)
        sl.setdefault(6, []).extend(adv())
    a.extend(xfilter(place(mf(buf, accs), sl), 'k3'))

def gen_out(a):
    name = "out_kernel"
    khead(a, name)
    a("s_cmp_ge_u32 s2, 256")
    a("s_cbranch_scc1 k3_done")
    stamp_start(a)
    code_warm(a, name, "k3_done", 124, 56)
    a("s_load_dwordx2 s[4:5], s[0:1], 0")
    a("s_load_dwordx2 s[10:11], s[0:1], 64")
    a("s_load_dwordx2 s[12:13], s[0:1], 80")
    a("v_lshrrev_b32 v10, 6, v0")
    a(f"v_and_b32 v{V_LANE}, 63, v0")
    a(f"v_readfirstlane_b32 s{S_W}, v10")
    a("s_and_b32 s14, s2, 7")
    a("s_lshr_b32 s15, s2, 3")
    a("s_and_b32 s16, s14, 3")
    a("s_lshl_b32 s16, s16, 2")
    a("s_lshr_b32 s17, s15, 3")
    a(f"s_add_u32 s{S_MT}, s16, s17")
    a("s_lshr_b32 s16, s14, 2")
    a("s_lshl_b32 s16, s16, 3")
    a("s_and_b32 s17, s15, 7")
    a(f"s_add_u32 s{S_NT}, s16, s17")
    if "k3fake" in XP:
        a(f"s_mov_b32 s{S_MT}, s14")
        a(f"s_and_b32 s{S_NT}, s15, 1")
    if "k3fake2" in XP:
        a(f"s_mov_b32 s{S_MT}, 0")
        a(f"s_mov_b32 s{S_NT}, 0")
    if "k3map2" in XP:
        a("s_and_b32 s16, s14, 1")
        a("s_lshl_b32 s16, s16, 3")
        a("s_lshr_b32 s17, s15, 2")
        a(f"s_add_u32 s{S_MT}, s16, s17")
        a("s_lshr_b32 s16, s14, 1")
        a("s_lshl_b32 s16, s16, 2")
        a("s_and_b32 s17, s15, 3")
        a(f"s_add_u32 s{S_NT}, s16, s17")
    a(f"s_and_b32 s18, s{S_W}, 3")
    a(f"s_lshr_b32 s19, s{S_W}, 2")
    a(f"v_lshlrev_b32 v10, 4, v{V_LANE}")
    a(f"s_lshl_b32 s{S_M0A}, s{S_W}, 11")
    a(f"v_add_u32 v{V_DA}, s{S_M0A}, v10")
    a(f"s_mul_i32 s{S_KA}, s{S_MT}, {OU_MT}")
    a(f"s_add_u32 s{S_KA}, s{S_KA}, {hx(WS_OU)}")
    a(f"s_lshl_b32 s{S_M0W}, s{S_W}, 10")
    a(f"s_add_u32 s{S_M0W}, s{S_M0W}, {W_OFF}")
    a(f"s_lshl_b32 s20, s{S_W}, 10")
    a(f"v_add_u32 v{V_DW}, s20, v10")
    a(f"s_mul_i32 s{S_KW}, s{S_NT}, {WI_NT}")
    a(f"s_add_u32 s{S_KW}, s{S_KW}, {hx(WS_WI)}")
    a("s_lshl_b32 s20, s18, 11")
    a(f"v_add_u32 v{V_A0}, s20, v10")
    a(f"v_bfe_u32 v11, v{V_LANE}, 2, 2")
    a(f"v_lshrrev_b32 v12, 4, v{V_LANE}")
    a("v_lshl_add_u32 v13, v12, 2, v11")
    a("v_bfe_u32 v14, v13, 1, 2")
    a(f"v_and_b32 v15, 3, v{V_LANE}")
    a("v_lshlrev_b32 v15, 3, v15")
    a("v_lshl_add_u32 v15, v13, 7, v15")
    a("s_lshl_b32 s20, s19, 1")
    a("v_xor_b32 v14, s20, v14")
    a(f"v_lshl_add_u32 v{V_W0a}, v14, 5, v15")
    a("v_xor_b32 v14, 1, v14")
    a(f"v_lshl_add_u32 v{V_W0b}, v14, 5, v15")
    a("s_waitcnt lgkmcnt(0)")
    srd(a, SRD_WS, 12, WS_END)
    if PFW:
        a(f"s_cmp_eq_u32 s{S_W}, 8")
        a("s_cbranch_scc1 k3_pf")
    srd(a, SRD_X, 4, 2048 * 1024 * 2)
    srd(a, SRD_OUT, 10, 2048 * 1024 * 2)
    sim = VmSim()
    for st in range(3):
        a(f"s_mov_b32 s{S_WR}, {st*SLOT}")
        for g in dma(): a.extend(g)
        sim.issue(st, 3)
        if st == 0: a("s_barrier")
    a(f"s_lshl_b32 s20, s{S_MT}, 2")
    a("s_add_u32 s20, s20, s18")
    a("s_lshl_b32 s20, s20, 5")
    a(f"v_bfe_u32 v11, v{V_LANE}, 2, 2")
    a("v_lshlrev_b32 v11, 3, v11")
    a(f"v_and_b32 v13, 3, v{V_LANE}")
    a("v_add3_u32 v11, v11, v13, s20")
    a("v_lshlrev_b32 v11, 11, v11")
    a("v_lshl_add_u32 v11, v12, 3, v11")
    a(f"s_lshl_b32 s20, s{S_NT}, 7")
    a("s_lshl_b32 s21, s19, 6")
    a("s_add_u32 s20, s20, s21")
    a("v_add_u32 v11, s20, v11")
    a("v_add_u32 v12, 0x2000, v11")
    for r in range(32): a(f"v_mov_b32 v{ACC[0]+r}, 0")
    a(f"v_mov_b32 v{V_A}, v{V_A0}")
    a(f"v_mov_b32 v{V_Wa}, v{V_W0a}")
    a(f"v_mov_b32 v{V_Wb}, v{V_W0b}")
    a(f"s_mov_b32 s{S_RD}, 0")
    stamp(a, 1)
    a(f"s_waitcnt vmcnt({sim.need(0)})")
    a("s_barrier")
    stamp(a, 2)
    a.extend(reads(0))
    a.extend(adv())
    ramp = {0: [3, 4], 1: [5, 6], 2: [7, 8], 3: [9]}
    for s in range(4):
        step(a, s & 1, 0, sim.need(s + 1), True, [(st % NSLOT) * SLOT for st in ramp[s]])
        for st in ramp[s]: sim.issue(st, 3)
    VM = 3 * (NSLOT - 2)
    for s in range(4, 38):
        assert sim.need(s + 1) == VM
        sim.issue(s + NSLOT, 3)
    def loop(lbl, n, accs):
        a(f"s_mov_b32 s{S_IT}, {n}")
        a.raw(".p2align 3")
        a.label(lbl)
        step(a, 0, accs, VM, True, [None])
        step(a, 1, accs, VM, True, [None])
        a(f"s_sub_u32 s{S_IT}, s{S_IT}, 1")
        a(f"s_cmp_lg_u32 s{S_IT}, 0")
        a(f"s_cbranch_scc1 {lbl}")
    loop("k3_l1", 6, 0)
    loop("k3_l3", 11, 1)
    for mb in range(2):
        for b in range(2):
            a(f"buffer_load_dwordx2 {vr(XR+(mb*2+b)*2,2)}, v{11+mb}, s[{SRD_X}:{SRD_X+3}], 0 offen offset:{b*32}")
    sim.issue("x", 4)
    for s in range(38, 44):
        step(a, s & 1, 1, sim.need(s + 1) if s < 43 else None, s < 43, [])
    stamp(a, 3)
    a("s_waitcnt vmcnt(0)")
    a("s_nop 7")
    a(f"s_mov_b32 s20, {hx(f2u(-math.log2(math.e)))}")
    for k in range(16):
        a(f"v_mul_f32 v{16+k}, s20, v{ACC[1]+k}")
    for k in range(16):
        a(f"v_exp_f32 v{16+k}, v{16+k}")
    for k in range(16):
        a(f"v_add_f32 v{16+k}, 1.0, v{16+k}")
    for k in range(16):
        a(f"v_rcp_f32 v{16+k}, v{16+k}")
    for k in range(16):
        a(f"v_mul_f32 v{16+k}, v{16+k}, v{ACC[1]+k}")
    for k in range(8):
        a(f"v_lshlrev_b32 v{32+2*k}, 16, v{XR+k}")
        a(f"v_and_b32 v{33+2*k}, 0xffff0000, v{XR+k}")
    for k in range(16):
        a(f"v_fmac_f32 v{32+k}, v{16+k}, v{ACC[0]+k}")
    for k in range(8):
        a(f"v_cvt_pk_bf16_f32 v{48+k}, v{32+2*k}, v{33+2*k}")
    for mb in range(2):
        for b in range(2):
            a(f"buffer_store_dwordx2 {vr(48+(mb*2+b)*2,2)}, v{11+mb}, s[{SRD_OUT}:{SRD_OUT+3}], 0 offen offset:{b*32}")
    stamp(a, 5)
    a("s_waitcnt vmcnt(0)")
    stamp_end(a, 3, S_W, 100)
    a("s_endpgm")
    if PFW:
        a.label("k3_pf")
        a(f"v_and_b32 v10, 15, v{V_LANE}")
        a(f"v_bfe_u32 v11, v{V_LANE}, 4, 1")
        a(f"v_lshrrev_b32 v12, 5, v{V_LANE}")
        a("s_and_b32 s16, s15, 7")
        a("s_lshr_b32 s17, s15, 3")
        a("s_lshl_b32 s16, s16, 11")
        a(f"s_add_u32 s16, s16, s{S_KA}")
        a("s_lshl_b32 s17, s17, 11")
        a(f"s_add_u32 s17, s17, s{S_KW}")
        a("v_lshlrev_b32 v10, 7, v10")
        a("v_lshlrev_b32 v13, 14, v12")
        a("v_add3_u32 v13, v13, v10, s16")
        a("v_lshlrev_b32 v14, 13, v12")
        a("v_add3_u32 v14, v14, v10, s17")
        a("v_cmp_eq_u32 vcc, 0, v11")
        a("v_mov_b32 v15, 0x4000")
        a("v_mov_b32 v16, 0x8000")
        a("v_cndmask_b32 v13, v14, v13, vcc")
        a("v_cndmask_b32 v15, v15, v16, vcc")
        a("v_add_u32 v13, v13, v15")
        def pf():
            a(f"buffer_load_dword v17, v13, s[{SRD_WS}:{SRD_WS+3}], 0 offen")
            a("v_add_u32 v13, v13, v15")
        a("s_barrier")
        for k in range(PF0): pf()
        a(f"s_mov_b32 s{S_IT}, {21 - PF0}")
        a.label("k3_pfl")
        a("s_barrier")
        a("s_barrier")
        pf()
        a(f"s_sub_u32 s{S_IT}, s{S_IT}, 1")
        a(f"s_cmp_lg_u32 s{S_IT}, 0")
        a("s_cbranch_scc1 k3_pfl")
        a("s_waitcnt vmcnt(0)")
    a.label("k3_done")
    a("s_endpgm")
    return name, kd(name, 128, 64), f"grid=(256,1,1) block=({576 if PFW else 512},1,1) lds={SLOT*NSLOT}"
```

```python
from common import *
import math, os

EXP = os.environ.get("EXP", "").split(",")
SC = " sc0 sc1" if "sc01" in EXP else " sc1"
PL = " sc1" if "pl1" in EXP else " sc0 sc1"
SLP = int(os.environ.get("SLP", "2"))
LD = " sc1"
S_W, S_TAG, S_X, S_C, S_W3 = 3, 4, 5, 6, 7
SRD_WS, SRD_W, SRD_SP, SRD_WO, SRD_WOUT, SRD_X, SRD_OUT, SRD_B = 36, 40, 44, 48, 52, 56, 60, 96
V_LANE = 9
TAIL = []

STM = os.environ.get("STM", "")
_stamp = stamp
def stamp(a, k, mode=""):
    if mode == STM or (mode == "" and k not in (3, 6, 7, 8)):
        _stamp(a, k)

def R(s): return f"s[{s}:{s+3}]"

def flag_store(a, soff, vt):
    a(f"v_mov_b32 v{vt}, s{S_TAG}")
    a(f"v_mov_b32 v{vt+1}, 0")
    a("s_waitcnt vmcnt(0)")
    a("s_mov_b64 exec, 1")
    a(f"buffer_store_dword v{vt}, v{vt+1}, {R(SRD_WS)}, {soff} offen{SC}")
    a("s_mov_b64 exec, -1")

def flag_store_last(a, tag, soff, lds_addr, vt, stmp):
    a(f"v_mov_b32 v{vt}, {lds_addr}")
    a(f"v_mov_b32 v{vt+1}, 1")
    a("s_waitcnt vmcnt(0)")
    a("s_mov_b64 exec, 1")
    a(f"ds_add_rtn_u32 v{vt+1}, v{vt}, v{vt+1}")
    a(f"v_mov_b32 v{vt}, s{S_TAG}")
    a("s_waitcnt lgkmcnt(0)")
    a(f"v_readfirstlane_b32 s{stmp}, v{vt+1}")
    a(f"v_mov_b32 v{vt+1}, 0")
    a(f"s_cmp_lg_u32 s{stmp}, 3")
    a(f"s_cbranch_scc1 {tag}_nf")
    a(f"buffer_store_dword v{vt}, v{vt+1}, {R(SRD_WS)}, {soff} offen{SC}")
    a.label(f"{tag}_nf")
    a("s_mov_b64 exec, -1")

def poll(a, tag, vaddrs, soff, vt, scnt):
    a(f"s_mov_b32 s{scnt}, 0x40000")
    a.label(f"{tag}_l")
    for k, va in enumerate(vaddrs):
        a(f"buffer_load_dword v{vt+k}, v{va}, {R(SRD_WS)}, {soff} offen{PL}")
    a("s_waitcnt vmcnt(0)")
    for k in range(len(vaddrs)):
        a(f"v_xor_b32 v{vt+k}, s{S_TAG}, v{vt+k}")
    for k in range(1, len(vaddrs)):
        a(f"v_or_b32 v{vt}, v{vt}, v{vt+k}")
    a(f"v_cmp_ne_u32 vcc, 0, v{vt}")
    a(f"s_sub_u32 s{scnt}, s{scnt}, 1")
    a(f"s_cselect_b64 vcc, 0, vcc")
    a("s_nop 3")
    a(f"s_cbranch_vccz {tag}_d")
    a(f"s_sleep {SLP}")
    a(f"s_branch {tag}_l")
    a.label(f"{tag}_d")

SLOT = 32768; NSLOT = 5; WQ_OFF = 16384; WZ_OFF = 24576
V_A0, V_W0, V_A, V_W, V_DA, V_DW0, V_DW1 = 1, 2, 3, 4, 5, 6, 7
XF = [16, 32]; WF = [48, 76]; ACC = 104
def acc(mb, blk): return ACC + (blk * 4 + mb) * 4
S_MT, S_JT, S_RD, S_WR, S_KA, S_KW, S_M0A, S_M0W, S_IT, S_CO, S_CD = 24, 25, 26, 27, 28, 29, 30, 31, 32, 33, 34
S_XC0, S_XC1, S_XD0, S_XD1, S_F1 = 8, 11, 12, 13, 15
CP = 232; V_CS, V_CD = 230, 231
CPX = 200; V_XS, V_L16 = 224, 225
A_SLOT = 16384; A_HALF = 8192; A_NSLOT = 4
G_BASE = 65536; G_HALF = 7168; G_SLOT = 2 * G_HALF
L_ACNT = 123904; L_GCNT = L_ACNT + 256; L_AFLAG = L_ACNT + 512; L_C1Q = L_AFLAG + 4; L_C1Z = L_AFLAG + 8; L_C2A = L_AFLAG + 12; L_C2G = L_AFLAG + 16; L_STAT = 126976; L_LNC = 1024

def mfma(kind, mb, blk, buf):
    d = acc(mb, blk)
    w = vr(WF[buf] + 4 * blk, 4); x = vr(XF[buf] + 4 * mb, 4)
    if kind == "z2" or (kind == "q" and blk >= 4):
        return f"v_mfma_f32_16x16x32_bf16 {vr(d,4)}, {x}, {w}, {vr(d,4)}"
    return f"v_mfma_f32_16x16x32_bf16 {vr(d,4)}, {w}, {x}, {vr(d,4)}"

def frag_reads(kind, buf):
    nb = 6 if kind == "q" else 7
    off = WQ_OFF if kind == "q" else WZ_OFF
    xs = [f"ds_read_b128 {vr(XF[buf]+4*mb,4)}, v{V_A} offset:{mb*1024}" for mb in range(4)]
    ws = []
    for blk in range(nb):
        for rho in range(2):
            ws.append(f"ds_read_b64_tr_b16 {vr(WF[buf]+4*blk+2*rho,2)}, v{V_W} offset:{off+rho*4096+blk*32}")
    return ws[:2] + xs + ws[2:]

def dma_groups(kind):
    wstride = 32 * (6144 if kind == "q" else 7168)
    return [[f"s_add_u32 m0, s{S_WR}, s{S_M0A}", "s_nop 0",
             f"buffer_load_dwordx4 v{V_DA}, {R(SRD_WS)}, s{S_KA} offen{LD} lds"],
            [f"buffer_load_dwordx4 v{V_DA}, {R(SRD_WS)}, s{S_KA} offen offset:1024{LD} lds",
             f"s_add_u32 s{S_KA}, s{S_KA}, 16384"],
            [f"s_add_u32 m0, s{S_WR}, s{S_M0W}", "s_nop 0",
             f"buffer_load_dwordx4 v{V_DW0}, {R(SRD_W)}, s{S_KW} offen lds"],
            [f"buffer_load_dwordx4 v{V_DW1}, {R(SRD_W)}, s{S_KW} offen offset:1024 lds",
             f"s_add_u32 s{S_KW}, s{S_KW}, {wstride}"]]

def slot_advance():
    return [f"s_mov_b32 s{S_WR}, s{S_RD}",
            f"s_add_u32 s{S_RD}, s{S_RD}, {SLOT}",
            f"s_cmp_eq_u32 s{S_RD}, {SLOT*NSLOT}",
            f"s_cselect_b32 s{S_RD}, 0, s{S_RD}",
            f"v_add_u32 v{V_A}, s{S_RD}, v{V_A0}",
            f"v_add_u32 v{V_W}, s{S_RD}, v{V_W0}"]

def cp_load(k):
    if k < 4:
        return [f"buffer_load_dwordx4 {vr(CP+4*k,4)}, v{V_CS}, {R(SRD_SP)}, 0 offen offset:{k*128}"]
    k -= 4
    if k < 2:
        return [f"buffer_load_dwordx4 {vr(CPX+4*k,4)}, v{V_XS}, {R(SRD_WO)}, s{S_XC0} offen", f"s_add_u32 s{S_XC0}, s{S_XC0}, 16384"]
    return [f"buffer_load_dwordx4 {vr(CPX+4*k,4)}, v{V_XS}, {R(SRD_WOUT)}, s{S_XC1} offen", f"s_add_u32 s{S_XC1}, s{S_XC1}, 16384"]
def cp_store(k):
    if k < 4:
        so = f"s{S_CD}" if k < 2 else f"s{S_CD+1}"
        return f"buffer_store_dwordx4 {vr(CP+4*k,4)}, v{V_CD}, {R(SRD_WS)}, {so} offen offset:{(k&1)*2048}{SC}"
    k -= 4
    so = f"s{S_XD0}" if k < 2 else f"s{S_XD1}"
    return f"buffer_store_dwordx4 {vr(CPX+4*k,4)}, v{V_L16}, {R(SRD_WS)}, {so} offen offset:{(k if k < 2 else k-2)*1024}{SC}"

def step(a, kind, buf, vm, do_read, dmas, extra=None, pre=None, mid=None):
    nb = 6 if kind == "q" else 7
    if pre: a.extend(pre)
    a(f"s_waitcnt vmcnt({vm}) lgkmcnt(0)" if vm is not None else "s_waitcnt lgkmcnt(0)")
    a("s_barrier")
    ms = [mfma(kind, mb, blk, buf) for blk in range(nb) for mb in range(4)]
    slots = {}
    if do_read:
        for i, r in enumerate(frag_reads(kind, buf ^ 1)):
            slots.setdefault(i, []).append(r)
    pos = ([3, 8, 13, 18] if kind == "q" else [4, 10, 16, 21]) if len(dmas) == 1 else [0, 2, 4, 6, 9, 12, 15, 18]
    gs = []
    for d in dmas:
        g = dma_groups(kind)
        if d is not None:
            g[0] = [f"s_mov_b32 s{S_WR}, {d}"] + g[0]
        gs += g
    for p, g in zip(pos, gs):
        slots.setdefault(p, []).extend(g)
    for k, e in enumerate(extra or []):
        slots.setdefault(len(ms) - 5 - 5 * k, []).append(e)
    if do_read:
        slots.setdefault(len(ms) - 3, []).extend(slot_advance())
    if mid: slots.setdefault(0, []).extend(mid)
    emit(a, xfilter(place(ms, slots), 'g1'))

def mainloop(a, kind):
    L = f"g1_{kind}"
    nb = 6 if kind == "q" else 7
    for r in range(ACC, ACC + nb * 16):
        a(f"v_mov_b32 v{r}, 0")
    a(f"v_mov_b32 v{V_A}, v{V_A0}")
    a(f"v_mov_b32 v{V_W}, v{V_W0}")
    a(f"s_mov_b32 s{S_RD}, 0")
    if kind != "q":
        a(f"s_cmp_lg_u32 s{S_W}, 4")
        a(f"s_cbranch_scc1 {L}_np")
        a(f"v_and_b32 v10, 31, v{V_LANE}")
        a("v_lshlrev_b32 v10, 7, v10")
        a(f"s_lshl_b32 s16, s{S_MT}, 12")
        a(f"s_add_u32 s16, s16, {hx(WS_FL + FL_LN)}")
        poll(a, L + "_pl", [10], "s16", 12, 17)
        a.label(f"{L}_np")
    a("s_barrier")
    stamp(a, 2)
    sim = VmSim()
    for st in range(2):
        a(f"s_mov_b32 s{S_WR}, {st*SLOT}")
        for g in dma_groups(kind):
            a.extend(g)
        sim.issue(st, 4)
        if st == 0:
            a("s_barrier")
    a(f"s_waitcnt vmcnt({sim.need(0)})")
    a("s_barrier")
    stamp(a, 3)
    a.extend(frag_reads(kind, 0))
    a.extend(slot_advance())
    ramp = {0: [2, 3], 1: [4, 5], 2: [6, 7], 3: [8]}
    for s in range(4):
        step(a, kind, s & 1, sim.need(s + 1), True, [(st % NSLOT) * SLOT for st in ramp[s]])
        for st in ramp[s]: sim.issue(st, 4)
    for s in range(4, 26):
        assert sim.need(s + 1) == 12
        sim.issue(s + 5, 4)
    a(f"s_mov_b32 s{S_IT}, 11")
    a.raw(".p2align 3")
    a.label(L + "_loop")
    if kind == "q":
        table = [(11 - k, cp_load(2 * k) + cp_load(2 * k + 1)) for k in range(5)]
        table += [(6 - k, [cp_store(2 * k), cp_store(2 * k + 1)]) for k in range(5)]
    else:
        table = [(11 - 2 * k, cp_load(2 * k) + cp_load(2 * k + 1)) for k in range(2)]
        table += [(6 - 2 * k, [cp_store(2 * k), cp_store(2 * k + 1)]) for k in range(2)]
    mid = [f"s_add_u32 s10, s{S_IT}, s{S_CO}"] + rare_instrs(L + "_cp", "s10", table, TAIL)
    step(a, kind, 0, 12, True, [None], mid=mid)
    step(a, kind, 1, 12, True, [None])
    a(f"s_sub_u32 s{S_IT}, s{S_IT}, 1")
    a(f"s_cmp_lg_u32 s{S_IT}, 0")
    a(f"s_cbranch_scc1 {L}_loop")
    per = {}
    for s in range(26, 32):
        vm = sim.need(s + 1) if s <= 30 else None
        pre = None
        if s == 31:
            pre = [f"v_lshlrev_b32 v10, 2, v{V_LANE}", f"v_add_u32 v10, {L_ACNT}, v10", "v_mov_b32 v11, 0",
                   "ds_write_b32 v10, v11", "ds_write_b32 v10, v11 offset:256", "ds_write_b32 v10, v11 offset:512"]
        step(a, kind, s & 1, vm, s <= 30, [None] if s == 26 else [], per.get(s), pre)
        if s == 26: sim.issue(31, 4)
        sim.issue("st", len(per.get(s, [])))
    a("s_nop 7")
    stamp(a, 4)

def copy_setup(a, q):
    a(f"s_lshl_b32 s16, s{S_JT}, 3")
    a(f"s_add_u32 s16, s16, s{S_MT}")
    a("s_lshl_b32 s10, s16, 3")
    a(f"s_add_u32 s10, s10, s{S_W}")
    a(f"s_lshl_b32 s{S_F1}, s16, 7")
    a(f"s_add_u32 s{S_F1}, s{S_F1}, {hx(WS_FL + (FL_1Q if q else FL_1Z))}")
    a("s_lshr_b32 s17, s10, 4")
    a("s_bfe_u32 s18, s10, 0x10003")
    a("s_and_b32 s19, s10, 7")
    a(f"v_lshrrev_b32 v10, 3, v{V_LANE}")
    a("s_lshl_b32 s20, s18, 3")
    a("v_add_u32 v10, s20, v10")
    a("s_lshr_b32 s20, s17, 1")
    a("s_lshl_b32 s20, s20, 5")
    a("s_and_b32 s21, s17, 1")
    a("s_lshl_b32 s21, s21, 2")
    a("s_add_u32 s20, s20, s21")
    a("v_lshrrev_b32 v11, 2, v10")
    a("v_lshlrev_b32 v11, 3, v11")
    a("v_and_b32 v12, 3, v10")
    a("v_add3_u32 v11, v11, v12, s20")
    a("v_lshlrev_b32 v11, 12, v11")
    a(f"v_and_b32 v12, 7, v{V_LANE}")
    a("v_lshl_add_u32 v11, v12, 4, v11")
    a("s_lshl_b32 s20, s19, 9")
    a(f"v_add_u32 v{V_CS}, s20, v11")
    a("v_lshlrev_b32 v12, 8, v12")
    a(f"v_lshl_add_u32 v{V_CD}, v10, 4, v12")
    a(f"s_lshl_b32 s{S_CD}, s17, 16")
    a("s_lshl_b32 s20, s19, 13")
    a(f"s_add_u32 s{S_CD}, s{S_CD}, s20")
    a(f"s_add_u32 s{S_CD}, s{S_CD}, {hx(WS_SPI)}")
    a(f"s_add_u32 s{S_CD+1}, s{S_CD}, 4096")
    a(f"s_and_b32 s{S_CO}, s{S_C}, 1")
    if not q: return
    a(f"v_lshrrev_b32 v10, 3, v{V_LANE}")
    a(f"v_bfe_u32 v11, v{V_LANE}, 1, 2")
    a(f"v_bfe_u32 v12, v{V_LANE}, 4, 2")
    a("v_xor_b32 v11, v11, v12")
    a(f"v_and_b32 v12, 1, v{V_LANE}")
    a("v_lshlrev_b32 v12, 4, v12")
    a("v_lshl_add_u32 v11, v11, 5, v12")
    a(f"v_lshl_add_u32 v{V_XS}, v10, 11, v11")
    a(f"v_lshlrev_b32 v{V_L16}, 4, v{V_LANE}")
    a("s_lshl_b32 s16, s16, 2")
    a(f"s_add_u32 s16, s16, s{S_W}")
    a("s_lshr_b32 s17, s16, 6")
    a("s_and_b32 s18, s16, 63")
    a(f"s_lshl_b32 s{S_XC0}, s18, 15")
    a("s_lshl_b32 s20, s17, 7")
    a(f"s_add_u32 s{S_XC0}, s{S_XC0}, s20")
    a(f"s_mul_i32 s{S_XD0}, s17, {WI_NT}")
    a("s_lshl_b32 s20, s18, 11")
    a(f"s_add_u32 s{S_XD0}, s{S_XD0}, s20")
    a(f"s_add_u32 s{S_XD0}, s{S_XD0}, {hx(WS_WI)}")
    md, sh = magic_div(56, 1024)
    a(f"s_mul_i32 s17, s16, {md}")
    a(f"s_lshr_b32 s17, s17, {sh}")
    a("s_mul_i32 s18, s17, 56")
    a("s_sub_u32 s18, s16, s18")
    a(f"s_lshl_b32 s{S_XC1}, s18, 16")
    a("s_lshl_b32 s20, s17, 7")
    a(f"s_add_u32 s{S_XC1}, s{S_XC1}, s20")
    a(f"s_mul_i32 s{S_XD1}, s17, {WI_NT}")
    a("s_lshl_b32 s20, s18, 12")
    a(f"s_add_u32 s{S_XD1}, s{S_XD1}, s20")
    a(f"s_add_u32 s{S_XD1}, s{S_XD1}, {hx(WS_WI + 16*8192)}")
    a("s_cmp_lt_u32 s16, 896")
    a(f"s_cselect_b32 s{S_XD1}, s{S_XD1}, 0x40000000")
    a(f"s_cselect_b32 s{S_XC1}, s{S_XC1}, 0x40000000")

C_Q = math.log2(math.e) / math.sqrt(32.0)
GC = math.sqrt(2.0 / math.pi)
GA = -2.0 * GC * 0.044715 * math.log2(math.e)
GB = -2.0 * GC * math.log2(math.e)

def gelu_all(a, nregs, T):
    a(f"v_mov_b32 v{T}, {hx(f2u(GA))}"); a(f"v_mov_b32 v{T+1}, {hx(f2u(GA))}")
    a(f"v_mov_b32 v{T+2}, {hx(f2u(GB))}"); a(f"v_mov_b32 v{T+3}, {hx(f2u(GB))}")
    a(f"v_mov_b32 v{T+4}, 1.0"); a(f"v_mov_b32 v{T+5}, 1.0")
    G = 4
    for base in range(0, nregs, 2 * G):
        xs = [ACC + base + 2 * p for p in range(G)]
        ts = [T + 6 + 2 * p for p in range(G)]
        for x, t in zip(xs, ts): a(f"v_pk_mul_f32 {vr(t,2)}, {vr(x,2)}, {vr(x,2)}")
        for x, t in zip(xs, ts): a(f"v_pk_fma_f32 {vr(t,2)}, {vr(t,2)}, {vr(T,2)}, {vr(T+2,2)}")
        for x, t in zip(xs, ts): a(f"v_pk_mul_f32 {vr(t,2)}, {vr(t,2)}, {vr(x,2)}")
        for x, t in zip(xs, ts):
            a(f"v_exp_f32 v{t}, v{t}"); a(f"v_exp_f32 v{t+1}, v{t+1}")
        for x, t in zip(xs, ts): a(f"v_pk_add_f32 {vr(t,2)}, {vr(t,2)}, {vr(T+4,2)}")
        for x, t in zip(xs, ts):
            a(f"v_rcp_f32 v{t}, v{t}"); a(f"v_rcp_f32 v{t+1}, v{t+1}")
        for x, t in zip(xs, ts): a(f"v_pk_mul_f32 {vr(x,2)}, {vr(x,2)}, {vr(t,2)}")

def round_stats(a, m, v, t):
    a(f"v_cvt_pk_bf16_f32 v{t}, v{m}, v{v}")
    a(f"v_lshlrev_b32 v{m}, 16, v{t}")
    a(f"v_and_b32 v{v}, 0xffff0000, v{t}")
    a(f"v_add_f32 v{v}, {hx(f2u(1e-5))}, v{v}")
    a(f"v_cvt_pk_bf16_f32 v{v}, v{v}, v{v}")
    a(f"v_and_b32 v{v}, 0xffff0000, v{v}")
    a(f"v_sqrt_f32 v{v}, v{v}")
    a("s_nop 0")
    a(f"v_cvt_pk_bf16_f32 v{v}, v{v}, v{v}")
    a(f"v_and_b32 v{v}, 0xffff0000, v{v}")
    a(f"v_rcp_f32 v{v}, v{v}")
    a("s_nop 0")

def gen_ln(a):
    a(f"v_and_b32 v10, 7, v{V_LANE}")
    a("v_lshlrev_b32 v10, 4, v10")
    a(f"s_lshl_b32 s16, s{S_W}, 2")
    a("v_add_u32 v11, s16, v10")
    a(f"v_lshrrev_b32 v12, 5, v{V_LANE}")
    a("v_lshlrev_b32 v12, 16, v12")
    a(f"v_bfe_u32 v13, v{V_LANE}, 3, 2")
    a("v_lshl_add_u32 v12, v13, 8, v12")
    a("v_add_u32 v12, v12, v10")
    a(f"s_lshl_b32 s18, s{S_MT}, 19")
    a(f"s_lshl_b32 s19, s{S_W}, 17")
    a("s_add_u32 s18, s18, s19")
    a(f"s_lshl_b32 s19, s{S_JT}, 9")
    a("s_and_b32 s19, s19, 0xfffffc00")
    a("s_add_u32 s18, s18, s19")
    a(f"s_and_b32 s19, s{S_JT}, 1")
    a("s_lshl_b32 s19, s19, 7")
    a("s_add_u32 s18, s18, s19")
    a(f"v_lshlrev_b32 v14, 2, v{V_LANE}")
    a(f"v_add_u32 v14, {L_LNC}, v14")
    a("v_mov_b32 v15, 1")
    a("s_mov_b32 s20, 0")
    a("s_waitcnt vmcnt(0)")
    stamp(a, 1)
    for k in range(16):
        a(f"v_lshlrev_b32 v{32+2*k}, 16, v{16+k}")
        a(f"v_and_b32 v{33+2*k}, 0xffff0000, v{16+k}")
    def reduce_row(lds_off):
        a("v_add_f32 v64, v64, v65")
        a("s_nop 1")
        a("v_add_f32_dpp v64, v64, v64 row_ror:8 row_mask:0xf bank_mask:0xf")
        a("v_mov_b32 v65, v64")
        a("s_nop 1")
        a("v_permlane32_swap_b32 v64, v65")
        a("s_nop 1")
        a("v_add_f32 v64, v64, v65")
        a("v_mov_b32 v65, v64")
        a("s_nop 1")
        a("v_permlane16_swap_b32 v64, v65")
        a("s_nop 1")
        a("v_add_f32 v64, v64, v65")
        a(f"ds_write_b32 v11, v64 offset:{lds_off}")
        a("s_waitcnt lgkmcnt(0)")
        sync_block(a, f"ln_s{lds_off}", 14, 15, 66, 20, 21)
        a(f"ds_read_b128 v[68:71], v10 offset:{lds_off}")
        a("s_waitcnt lgkmcnt(0)")
        a("v_add_f32 v68, v68, v69")
        a("v_add_f32 v70, v70, v71")
        a("v_add_f32 v64, v68, v70")
    a("v_pk_add_f32 v[64:65], v[32:33], v[34:35]")
    a("v_pk_add_f32 v[66:67], v[36:37], v[38:39]")
    for k in range(4, 16, 2):
        a(f"v_pk_add_f32 v[64:65], v[64:65], {vr(32+2*k,2)}")
        a(f"v_pk_add_f32 v[66:67], v[66:67], {vr(34+2*k,2)}")
    a("v_pk_add_f32 v[64:65], v[64:65], v[66:67]")
    reduce_row(0)
    a(f"v_mul_f32 v76, {hx(f2u(-1.0/1024))}, v64")
    a("v_mov_b32 v77, v76")
    for k in range(16):
        a(f"v_pk_add_f32 {vr(80+2*(k&3),2)}, {vr(32+2*k,2)}, v[76:77]")
        if k == 0: a("v_pk_mul_f32 v[64:65], v[80:81], v[80:81]")
        else: a(f"v_pk_fma_f32 v[64:65], {vr(80+2*(k&3),2)}, {vr(80+2*(k&3),2)}, v[64:65]")
    reduce_row(256)
    a(f"v_mul_f32 v64, {hx(f2u(1.0/1024))}, v64")
    round_stats(a, 76, 64, 78)
    a("v_mov_b32 v77, v76")
    a("v_mov_b32 v65, v64")
    for k in range(16):
        t = 80 + 4 * (k & 1)
        a(f"v_pk_add_f32 {vr(t,2)}, {vr(32+2*k,2)}, v[76:77]")
        a(f"v_cvt_pk_bf16_f32 v{t+2}, v{t}, v{t+1}")
        a(f"v_lshlrev_b32 v{t}, 16, v{t+2}")
        a(f"v_and_b32 v{t+1}, 0xffff0000, v{t+2}")
        a(f"v_pk_mul_f32 {vr(t,2)}, {vr(t,2)}, v[64:65]")
        a(f"v_cvt_pk_bf16_f32 v{16+k}, v{t}, v{t+1}")
        if k % 4 == 3:
            sl = k // 4
            a(f"buffer_store_dwordx4 v[{16+4*sl}:{19+4*sl}], v12, {R(SRD_WS)}, s18 offen{SC}")
            if sl < 3: a("s_add_u32 s18, s18, 16384")
    a(f"s_lshl_b32 s16, s{S_MT}, 5")
    a(f"s_add_u32 s16, s16, s{S_JT}")
    a("s_lshl_b32 s16, s16, 7")
    a(f"s_add_u32 s16, s16, {hx(WS_FL + FL_LN)}")

def g1_common_setup(a):
    a(f"v_lshlrev_b32 v10, 4, v{V_LANE}")
    a(f"s_lshl_b32 s{S_M0A}, s{S_W}, 11")
    a(f"v_add_u32 v{V_DA}, s{S_M0A}, v10")
    a(f"s_lshl_b32 s{S_KA}, s{S_MT}, 19")
    a(f"s_lshl_b32 s17, s{S_W3}, 12")
    a(f"v_add_u32 v{V_A0}, s17, v10")
    a(f"v_bfe_u32 v11, v{V_LANE}, 2, 2")
    a(f"v_and_b32 v12, 3, v{V_LANE}")
    a(f"v_bfe_u32 v13, v{V_LANE}, 4, 1")
    a(f"v_lshrrev_b32 v14, 5, v{V_LANE}")
    a("v_lshlrev_b32 v15, 11, v14")
    a("v_lshl_add_u32 v15, v12, 3, v15")
    a(f"s_mov_b32 s{S_KW}, 0")

def gen_gemm1_q(a):
    g1_common_setup(a)
    a(f"s_lshl_b32 s17, s{S_W3}, 11")
    a(f"s_add_u32 s{S_M0W}, s17, {WQ_OFF}")
    a("v_mul_u32_u24 v96, 800, v13")
    a("v_mul_u32_u24 v97, 192, v11")
    a(f"v_add3_u32 v{V_W0}, v15, v96, v97")
    m12, sh12 = magic_div(12, 128)
    a(f"s_mul_i32 s20, s{S_W3}, 49152")
    a(f"s_lshl_b32 s17, s{S_JT}, 7")
    a("s_add_u32 s20, s20, s17")
    a(f"s_lshl_b32 s17, s{S_JT}, 6")
    a(f"s_sub_u32 s17, {4096-128}, s17")
    for inst, vd in ((0, V_DW0), (1, V_DW1)):
        a(f"v_add_u32 v96, {64*inst}, v{V_LANE}")
        a("v_cmp_le_u32 vcc, 50, v96")
        a("v_subrev_u32 v97, 2, v96")
        a("s_nop 0")
        a("v_cndmask_b32 v97, v96, v97, vcc")
        a(f"v_mul_u32_u24 v98, {m12}, v97")
        a(f"v_lshrrev_b32 v98, {sh12}, v98")
        a("v_mul_u32_u24 v99, 12, v98")
        a("v_sub_u32 v99, v97, v99")
        a("v_mul_u32_u24 v98, 6144, v98")
        a("v_lshl_add_u32 v98, v99, 4, v98")
        a("v_add_u32 v98, s20, v98")
        a("v_lshrrev_b32 v99, 3, v99")
        a("v_mul_lo_u32 v99, v99, s17")
        a("v_add_u32 v98, v98, v99")
        if inst:
            a("v_subrev_u32 v98, 1024, v98")
        a("v_lshrrev_b32 v99, 1, v96")
        a("v_cmp_eq_u32 vcc, 24, v99")
        a("v_mov_b32 v100, 0x40000000")
        a("s_nop 0")
        a("v_cndmask_b32 v98, v98, v100, vcc")
        a("v_cmp_le_u32 vcc, 98, v96")
        a("s_nop 1")
        a(f"v_cndmask_b32 v{vd}, v98, v100, vcc")
    copy_setup(a, True)

def gen_q_epilogue(a):
    a(f"v_and_b32 v8, 15, v{V_LANE}")
    a(f"v_lshrrev_b32 v10, 4, v{V_LANE}")
    a("v_lshlrev_b32 v10, 9, v10")
    a("v_lshl_add_u32 v12, v8, 4, v10")
    a("v_lshrrev_b32 v11, 3, v8")
    a("v_lshl_add_u32 v11, v11, 8, v10")
    a(f"v_and_b32 v8, 7, v{V_LANE}")
    a("v_lshl_add_u32 v11, v8, 4, v11")
    a(f"s_lshl_b32 s16, s{S_MT}, 14")
    a(f"s_lshl_b32 s17, s{S_W3}, 12")
    a("s_add_u32 s16, s16, s17")
    a(f"s_lshl_b32 s19, s{S_JT}, 18")
    a("s_add_u32 s19, s19, s16")
    a(f"s_add_u32 s19, s19, {hx(WS_Q)}")
    a("s_add_u32 s18, s19, 0x20000")
    a(f"s_lshl_b32 s17, s{S_JT}, 17")
    a("s_add_u32 s17, s17, s16")
    a(f"s_add_u32 s17, s17, {hx(WS_V)}")
    a(f"s_cmp_lt_u32 s{S_JT}, 16")
    a(f"s_cselect_b32 s20, {hx(f2u(C_Q))}, 1.0")
    for P in range(2):
        for db in range(2):
            t = 48 + 4 * (P * 2 + db)
            for b in range(2):
                r = acc(2 * P + b, 4 + db)
                a(f"v_cvt_pk_bf16_f32 v{t+2*b}, v{r}, v{r+1}")
                a(f"v_cvt_pk_bf16_f32 v{t+2*b+1}, v{r+2}, v{r+3}")
            a(f"buffer_store_dwordx4 {vr(t,4)}, v12, {R(SRD_WS)}, s17 offen offset:{P*2048+db*256}{SC}")
    for hp in range(2):
        for mb in range(4):
            t = 16 + 4 * mb + 16 * hp
            for b in range(2):
                r = acc(mb, 2 * hp + b)
                for e in range(4):
                    a(f"v_mul_f32 v{r+e}, s20, v{r+e}")
                a(f"v_cvt_pk_bf16_f32 v{t+2*b}, v{r}, v{r+1}")
                a(f"v_cvt_pk_bf16_f32 v{t+2*b+1}, v{r+2}, v{r+3}")
            a(f"buffer_store_dwordx4 {vr(t,4)}, v11, {R(SRD_WS)}, s{19-hp} offen offset:{(mb>>1)*2048+(mb&1)*128}{SC}")

def gen_gemm1_z_setup(a):
    g1_common_setup(a)
    a(f"s_lshl_b32 s17, s{S_W3}, 11")
    a(f"s_add_u32 s{S_M0W}, s17, {WZ_OFF}")
    a("v_lshl_add_u32 v96, v13, 2, v11")
    a("v_mul_u32_u24 v96, 224, v96")
    a(f"v_add_u32 v{V_W0}, v15, v96")
    m14, sh14 = magic_div(14, 128)
    a(f"s_mul_i32 s20, s{S_W3}, 57344")
    a(f"s_mul_i32 s17, s{S_JT}, 224")
    a("s_add_u32 s20, s20, s17")
    a(f"s_and_b32 s21, s{S_JT}, 1")
    a("s_lshl_b32 s21, s21, 1")
    for inst, vd in ((0, V_DW0), (1, V_DW1)):
        a(f"v_add_u32 v96, {64*inst}, v{V_LANE}")
        a(f"v_mul_u32_u24 v98, {m14}, v96")
        a(f"v_lshrrev_b32 v98, {sh14}, v98")
        a("v_mul_u32_u24 v99, 14, v98")
        a("v_sub_u32 v99, v96, v99")
        a("v_add_u32 v99, s21, v99")
        a("v_cmp_le_u32 vcc, 14, v99")
        a("v_subrev_u32 v97, 14, v99")
        a("s_nop 0")
        a("v_cndmask_b32 v99, v99, v97, vcc")
        a("v_mul_u32_u24 v98, 7168, v98")
        a("v_lshl_add_u32 v98, v99, 4, v98")
        a("v_add_u32 v98, s20, v98")
        if inst:
            a("v_subrev_u32 v98, 1024, v98")
        a("v_mov_b32 v100, 0x40000000")
        a("v_cmp_le_u32 vcc, 112, v96")
        a("s_nop 1")
        a(f"v_cndmask_b32 v{vd}, v98, v100, vcc")
    copy_setup(a, False)

def gen_z1_epilogue(a):
    gelu_all(a, 112, 216)
    stamp(a, 3, "b")
    a(f"v_lshlrev_b32 v10, 4, v{V_LANE}")
    a(f"v_lshlrev_b32 v11, 3, v{V_LANE}")
    a(f"s_lshl_b32 s16, s{S_MT}, 4")
    a(f"s_lshl_b32 s17, s{S_W3}, 2")
    a("s_add_u32 s16, s16, s17")
    a("s_lshl_b32 s16, s16, 4")
    a(f"s_add_u32 s16, s16, s{S_JT}")
    a("s_mul_i32 s16, s16, 3584")
    a(f"s_add_u32 s16, s16, {hx(WS_Z1)}")
    for mb in range(4):
        t0 = 16 + 16 * mb
        for blk in range(7):
            r = acc(mb, blk)
            a(f"v_cvt_pk_bf16_f32 v{t0+2*blk}, v{r}, v{r+1}")
            a(f"v_cvt_pk_bf16_f32 v{t0+2*blk+1}, v{r+2}, v{r+3}")
        for p in range(3):
            a(f"buffer_store_dwordx4 {vr(t0+4*p,4)}, v10, {R(SRD_WS)}, s16 offen offset:{p*1024}{SC}")
        a(f"buffer_store_dwordx2 {vr(t0+12,2)}, v11, {R(SRD_WS)}, s16 offen offset:3072{SC}")
        if mb < 3:
            a(f"s_add_u32 s16, s16, {16*3584}")

def gen_z2_epilogue(a):
    gelu_all(a, 112, 216)
    stamp(a, 3, "b")
    for mb in range(4):
        for h in range(2):
            s1 = 16 + mb * 4 + 2 * h; s2 = 32 + mb * 4 + 2 * h
            r0 = acc(mb, 0) + 2 * h; r1 = acc(mb, 1) + 2 * h
            a(f"v_pk_add_f32 {vr(s1,2)}, {vr(r0,2)}, {vr(r1,2)}")
            a(f"v_pk_mul_f32 {vr(s2,2)}, {vr(r0,2)}, {vr(r0,2)}")
    for blk in range(1, 7):
        for mb in range(4):
            for h in range(2):
                s1 = 16 + mb * 4 + 2 * h; s2 = 32 + mb * 4 + 2 * h
                r = acc(mb, blk) + 2 * h
                if blk > 1:
                    a(f"v_pk_add_f32 {vr(s1,2)}, {vr(s1,2)}, {vr(r,2)}")
                a(f"v_pk_fma_f32 {vr(s2,2)}, {vr(r,2)}, {vr(r,2)}, {vr(s2,2)}")
    a("s_nop 1")
    for m in range(2):
        for st in range(2):
            for r in range(4):
                d = 48 + m * 8 + st * 4 + r
                lo = 16 + 16 * st + m * 4 + r
                hi = 16 + 16 * st + (m + 2) * 4 + r
                a(f"v_add_f32_dpp v{d}, v{lo}, v{lo} row_ror:8 row_mask:0xf bank_mask:0x3")
                a(f"v_add_f32_dpp v{d}, v{hi}, v{hi} row_ror:8 row_mask:0xf bank_mask:0xc")
    a("s_nop 1")
    for st in range(2):
        for r in range(4):
            d = 64 + 2 * r + st
            m0 = 48 + st * 4 + r; m1 = 56 + st * 4 + r
            a(f"v_add_f32_dpp v{d}, v{m0}, v{m0} row_ror:12 row_mask:0xf bank_mask:0x5")
            a(f"v_add_f32_dpp v{d}, v{m1}, v{m1} row_ror:4 row_mask:0xf bank_mask:0xa")
    a("s_nop 1")
    for k in range(8):
        a(f"v_add_f32_dpp v{72+k}, v{64+k}, v{64+k} quad_perm:[1,0,3,2] row_mask:0xf bank_mask:0xf")
    for r in range(4):
        a(f"v_mov_b32 v{82+4*r}, s{S_TAG}")
        a(f"v_mov_b32 v{83+4*r}, s{S_TAG}")
    for k in range(8):
        a(f"v_add_f32_dpp v{80+4*(k>>1)+(k&1)}, v{72+k}, v{72+k} quad_perm:[2,3,0,1] row_mask:0xf bank_mask:0xf")
    a(f"s_lshl_b32 s16, s{S_MT}, 2")
    a(f"s_add_u32 s16, s16, s{S_W3}")
    a("s_lshl_b32 s16, s16, 14")
    a(f"s_add_u32 s16, s16, {hx(WS_ST)}")
    a(f"s_and_b32 s17, s{S_JT}, 15")
    a("s_lshl_b32 s18, s17, 10")
    a("s_add_u32 s18, s18, s16")
    a(f"v_bfe_u32 v10, v{V_LANE}, 2, 2")
    a(f"v_lshrrev_b32 v11, 4, v{V_LANE}")
    a("v_lshlrev_b32 v10, 6, v10")
    a("v_lshl_add_u32 v10, v11, 4, v10")
    a("s_mov_b32 s22, 0x11111111")
    a("s_mov_b32 exec_lo, s22")
    a("s_mov_b32 exec_hi, s22")
    for r in range(4):
        a(f"buffer_store_dwordx4 {vr(80+4*r,4)}, v10, {R(SRD_WS)}, s18 offen offset:{r*256}{SC}")
    a("s_mov_b64 exec, -1")
    a(f"v_and_b32 v10, 3, v{V_LANE}")
    a("v_lshlrev_b32 v10, 8, v10")
    a(f"v_lshrrev_b32 v11, 2, v{V_LANE}")
    a("v_lshl_add_u32 v10, v11, 4, v10")
    for k in range(1, 4):
        a(f"s_add_u32 s{18+k}, s16, {k*4096}")
    a("s_mov_b32 s22, 0x40000")
    a.label("g1_poll")
    for j in range(16):
        so = "s16" if j < 4 else f"s{18+(j>>2)}"
        a(f"buffer_load_dwordx3 {vr(16+4*j,3)}, v10, {R(SRD_WS)}, {so} offen offset:{(j&3)*1024}{PL}")
    a("s_waitcnt vmcnt(0)")
    a("v_min3_u32 v12, v18, v22, v26")
    a("v_max3_u32 v13, v18, v22, v26")
    for j in range(3, 15, 2):
        a(f"v_min3_u32 v12, v12, v{18+4*j}, v{22+4*j}")
        a(f"v_max3_u32 v13, v13, v{18+4*j}, v{22+4*j}")
    a("v_min_u32 v12, v12, v78")
    a("v_max_u32 v13, v13, v78")
    a(f"v_xor_b32 v12, s{S_TAG}, v12")
    a(f"v_xor_b32 v13, s{S_TAG}, v13")
    a("v_or_b32 v12, v12, v13")
    a("v_cmp_ne_u32 vcc, 0, v12")
    a("s_sub_u32 s22, s22, 1")
    a("s_cselect_b64 vcc, 0, vcc")
    a("s_nop 3")
    a("s_cbranch_vccz g1_polled")
    a(f"s_sleep {SLP}")
    a("s_branch g1_poll")
    a.label("g1_polled")
    stamp(a, 6, "b")
    for k in range(1, 16):
        a(f"v_pk_add_f32 v[16:17], v[16:17], {vr(16+4*k,2)}")
    a(f"v_mul_f32 v16, {hx(f2u(1.0/1792))}, v16")
    a(f"v_mul_f32 v17, {hx(f2u(1.0/1792))}, v17")
    a("v_fma_f32 v17, -v16, v16, v17")
    a("v_max_f32 v17, 0, v17")
    round_stats(a, 16, 17, 18)
    a("v_mul_f32 v16, v16, v17")
    a("v_sub_f32 v16, 0, v16")
    a(f"s_lshl_b32 s22, s{S_W3}, 9")
    a(f"s_add_u32 s22, s22, {L_STAT}")
    a(f"v_lshlrev_b32 v11, 2, v{V_LANE}")
    a("v_add_u32 v11, s22, v11")
    a("ds_write_b32 v11, v17")
    a("ds_write_b32 v11, v16 offset:256")
    a(f"v_lshrrev_b32 v12, 4, v{V_LANE}")
    a("v_lshlrev_b32 v12, 4, v12")
    a("v_add_u32 v12, s22, v12")
    a("s_waitcnt lgkmcnt(0)")
    for mb in range(4):
        a(f"ds_read_b128 {vr(16+4*mb,4)}, v12 offset:{mb*64}")
        a(f"ds_read_b128 {vr(32+4*mb,4)}, v12 offset:{256+mb*64}")
    a(f"s_lshl_b32 s18, s{S_MT}, 3")
    a(f"s_lshl_b32 s19, s{S_W3}, 1")
    a("s_add_u32 s18, s18, s19")
    a("s_lshl_b32 s19, s17, 6")
    a("s_add_u32 s18, s18, s19")
    a("s_mul_i32 s18, s18, 7168")
    a(f"s_add_u32 s18, s18, {hx(WS_Z2)}")
    a("s_add_u32 s19, s18, 4096")
    a(f"v_lshlrev_b32 v10, 4, v{V_LANE}")
    a("s_waitcnt lgkmcnt(0)")
    for P in range(2):
        for blk in range(7):
            t = 48 + 4 * blk + 28 * P
            for b in range(2):
                mb = 2 * P + b
                r = acc(mb, blk)
                for h in range(2):
                    a(f"v_pk_fma_f32 {vr(r+2*h,2)}, {vr(r+2*h,2)}, {vr(16+4*mb+2*h,2)}, {vr(32+4*mb+2*h,2)}")
                a(f"v_cvt_pk_bf16_f32 v{t+2*b}, v{r}, v{r+1}")
                a(f"v_cvt_pk_bf16_f32 v{t+2*b+1}, v{r+2}, v{r+3}")
            so = "s18" if blk < 4 else "s19"
            a(f"buffer_store_dwordx4 {vr(t,4)}, v10, {R(SRD_WS)}, {so} offen offset:{(blk&3)*1024}{SC}")
        if P == 0:
            a("s_add_u32 s18, s18, 7168")
            a("s_add_u32 s19, s19, 7168")

def spin_tail(tag, vcnt, vt, starget, stmp):
    TAIL.extend([f"{tag}_s:",
                 f"    ds_read_b32 v{vt}, v{vcnt}",
                 "    s_waitcnt lgkmcnt(0)",
                 f"    v_readfirstlane_b32 s{stmp}, v{vt}",
                 f"    s_cmp_ge_u32 s{stmp}, s{starget}",
                 f"    s_cbranch_scc0 {tag}_s",
                 f"    s_branch {tag}_b"])
def sync_eval(tag, vcnt, vt, starget, stmp):
    spin_tail(tag, vcnt, vt, starget, stmp)
    return [f"v_readfirstlane_b32 s{stmp}, v{vt}"], [f"s_cmp_ge_u32 s{stmp}, s{starget}", f"s_cbranch_scc0 {tag}_s", f"{tag}_b:"]
def sync_block(a, tag, vcnt, vone, vt, starget, stmp):
    a(f"s_add_u32 s{starget}, s{starget}, 4")
    a(f"ds_add_u32 v{vcnt}, v{vone}")
    a.label(f"{tag}_s")
    a(f"ds_read_b32 v{vt}, v{vcnt}")
    a("s_waitcnt lgkmcnt(0)")
    a(f"v_readfirstlane_b32 s{stmp}, v{vt}")
    a(f"s_cmp_ge_u32 s{stmp}, s{starget}")
    a(f"s_cbranch_scc0 {tag}_s")
def emit(a, instrs):
    for x in instrs:
        if x.endswith(":"): a.label(x[:-1])
        else: a(x)

A_KT = 4
AV_KA, AV_K0, AV_D, AV_CNT, AV_ONE, AV_CK = 2, 4, 6, 7, 3, 5
QF = [200, 208]; NM = [24, 40]; SB = [56, 72]; PB = [88, 96]; OA = [104, 120]; LA = [136, 140]
KF = [144, 152]; VF = [160, 168]; ONE = 176; IDX = 180; AT = 184
AS_RD, AS_WR, AS_K, AS_V, AS_IT, AS_MODE, AS_M0, AS_H, AS_QB, AS_KB, AS_TG = 24, 25, 26, 27, 28, 29, 30, 31, 32, 33, 34

def a_qk(q, kb):
    s = SB[q]
    return [f"v_mfma_f32_32x32x16_bf16 {vr(s,16)}, {vr(KF[kb],4)}, {vr(QF[q],4)}, {vr(NM[q],16)}",
            f"v_mfma_f32_32x32x16_bf16 {vr(s,16)}, {vr(KF[kb]+4,4)}, {vr(QF[q]+4,4)}, {vr(s,16)}"]
def a_pv(q, vb):
    o = OA[q]; p = PB[q]
    return [f"v_mfma_f32_32x32x16_bf16 {vr(o,16)}, {vr(VF[vb],4)}, {vr(p,4)}, {vr(o,16)}",
            f"v_mfma_f32_32x32x16_bf16 {vr(o,16)}, {vr(VF[vb]+4,4)}, {vr(p+4,4)}, {vr(o,16)}",
            f"v_smfmac_f32_16x16x64_bf16 {vr(LA[q],4)}, {vr(ONE,4)}, {vr(p,8)}, v{IDX}"]
def a_exp(q):
    s = SB[q]; p = PB[q]
    e = [f"v_exp_f32 v{s+i}, v{s+i}" for i in range(16)]
    c = [f"v_cvt_pk_bf16_f32 v{p+k}, v{s+2*k}, v{s+2*k+1}" for k in range(8)]
    out = e[0:4]
    for k in range(6):
        out += [c[k]] + e[4 + 2 * k: 6 + 2 * k]
    return out + [c[6], c[7]]
def a_reads(kt, buf, k=True):
    r = []
    if k:
        r += [f"ds_read_b128 {vr(KF[buf]+4*t,4)}, v{AV_KA} offset:{kt*2048+t*1024}" for t in range(2)]
    r += [f"ds_read_b128 {vr(VF[buf]+4*t,4)}, v{AV_KA} offset:{A_HALF+kt*2048+t*1024}" for t in range(2)]
    return r
def a_dma(wr):
    g = []
    for part, sreg in ((0, AS_K), (1, AS_V)):
        for k in range(2):
            l = [f"buffer_load_dwordx4 v{AV_D}, {R(SRD_WS)}, s{sreg} offen offset:{k*1024}{LD} lds"]
            if k == 0:
                l = [f"s_add_u32 m0, {wr}, s{AS_M0}" if part == 0 else f"s_add_u32 m0, m0, {A_HALF}", "s_nop 0"] + l
            else:
                l.append(f"s_add_u32 s{sreg}, s{sreg}, {A_HALF}")
            g.append(l)
    return g
def a_slot(q_exp, q_qk, kb, q_pv, vb, extra, do_exp=True, do_qk=True, do_pv=True):
    qk = a_qk(q_qk, kb); pv = a_pv(q_pv, vb)
    if not do_exp:
        return pv
    pos = {}
    if do_qk: pos.update({-1: [qk[0]], 3: [qk[1]]})
    if do_pv: pos.update({8: [pv[0]], 13: [pv[1]], 18: [pv[2]]})
    for k, l in extra.items():
        pos[k] = pos.get(k, []) + l
    return place(a_exp(q_exp), pos)

def gen_attn_setup(a):
    a(f"s_lshl_b32 s10, s{S_X}, 2")
    a(f"s_lshr_b32 s12, s{S_C}, 3")
    a(f"s_add_u32 s{AS_H}, s10, s12")
    a(f"s_and_b32 s{AS_QB}, s{S_C}, 7")
    a(f"v_lshlrev_b32 v{AV_K0}, 4, v{V_LANE}")
    a(f"s_lshl_b32 s{AS_M0}, s{S_W}, 11")
    a(f"v_add_u32 v{AV_D}, s{AS_M0}, v{AV_K0}")
    a(f"s_lshl_b32 s{AS_KB}, s{AS_H}, 17")
    a(f"s_add_u32 s{AS_KB}, s{AS_KB}, {hx(WS_K)}")
    a(f"s_mov_b32 s{AS_MODE}, 1")
    a(f"s_mov_b32 s{AS_TG}, 0")
    a(f"v_lshlrev_b32 v{AV_CNT}, 2, v{V_LANE}")
    a(f"v_add_u32 v{AV_CNT}, {L_ACNT}, v{AV_CNT}")
    a(f"v_mov_b32 v{AV_ONE}, 1")
    a(f"v_and_b32 v{AT}, 2, v{V_LANE}")
    a(f"v_cmp_eq_u32 vcc, 0, v{AT}")
    a(f"v_mov_b32 v{AT+1}, 0x3f803f80")
    a(f"v_and_b32 v{AT}, 1, v{V_LANE}")
    a(f"v_cndmask_b32 v{ONE}, 0, v{AT+1}, vcc")
    a(f"v_cndmask_b32 v{ONE+1}, 0, v{AT+1}, vcc")
    a(f"v_xor_b32 v{ONE+2}, v{ONE}, v{AT+1}")
    a(f"v_xor_b32 v{ONE+3}, v{ONE}, v{AT+1}")
    a(f"v_mul_u32_u24 v{IDX}, 0xaaaa, v{AT}")
    a(f"v_add_u32 v{IDX}, 0x4444, v{IDX}")
    a(f"s_lshr_b32 s10, s{AS_H}, 1")
    a("s_add_u32 s12, s10, 16")
    a("s_lshl_b32 s12, s12, 3")
    a(f"s_lshl_b32 s13, s{AS_H}, 3")
    a("s_sub_u32 s13, s13, 8")
    a("s_lshl_b32 s10, s10, 3")
    a(f"s_add_u32 s10, s10, s{AS_QB}")
    a(f"v_add_u32 v{AT+1}, s12, v{V_LANE}")
    a(f"v_add_u32 v{AT+2}, s13, v{V_LANE}")
    a(f"v_cmp_gt_u32 vcc, 8, v{V_LANE}")
    a(f"v_mov_b32 v{AT}, s10")
    a("s_nop 0")
    a(f"v_cndmask_b32 v{AT+1}, v{AT+2}, v{AT+1}, vcc")
    a(f"v_cmp_gt_u32 vcc, 16, v{V_LANE}")
    a("s_nop 1")
    a(f"v_cndmask_b32 v{AT}, v{AT}, v{AT+1}, vcc")
    a(f"v_lshlrev_b32 v{AT}, 7, v{AT}")

def gen_attn(a):
    a(f"s_cmp_lg_u32 s{S_W}, 0")
    a("s_cbranch_scc1 a_np")
    a(f"s_mov_b32 s12, {hx(WS_FL + FL_1Q)}")
    poll(a, "a_pl", [AT], "s12", AT + 2, 13)
    a.label("a_np")
    sync_block(a, "a_sp", AV_CNT, AV_ONE, AV_CK, AS_TG, 12)
    stamp(a, 5)
    a(f"s_lshl_b32 s12, s{AS_QB}, 14")
    a(f"s_lshl_b32 s13, s{S_W}, 12")
    a("s_add_u32 s12, s12, s13")
    a(f"s_add_u32 s12, s12, s{AS_KB}")
    a(f"s_sub_u32 s12, s12, {hx(WS_K-WS_Q)}")
    for q in range(2):
        for t in range(2):
            a(f"buffer_load_dwordx4 {vr(QF[q]+4*t,4)}, v{AV_K0}, {R(SRD_WS)}, s12 offen offset:{q*2048+t*1024}{LD}")
    a.label("p2_restart")
    for t in range(2):
        a(f"buffer_load_dwordx4 {vr(KF[1]+4*t,4)}, v{AV_K0}, {R(SRD_WS)}, s{AS_KB} offen offset:{t*1024}{LD}")
    a(f"s_add_u32 s{AS_K}, s{AS_KB}, 2048")
    a(f"s_add_u32 s{AS_V}, s{AS_KB}, {hx(WS_V-WS_K)}")
    for st in range(3):
        for g in a_dma(str(st * A_SLOT)): a.extend(g)
    for q in range(2):
        for r in range(16): a(f"v_mov_b32 v{OA[q]+r}, 0")
        for r in range(4): a(f"v_mov_b32 v{LA[q]+r}, 0")
    a(f"v_mov_b32 v{AT+4}, 0xff800000")
    a(f"v_mov_b32 v{AT+5}, 0xff800000")
    a(f"s_mov_b32 s{AS_IT}, s{AS_MODE}")
    a(f"s_mov_b32 s12, s{AS_KB}")
    a("s_waitcnt vmcnt(12)")
    a.label("p2_maxloop")
    for q in range(2):
        s = SB[q]
        a(f"v_mfma_f32_32x32x16_bf16 {vr(s,16)}, {vr(KF[1],4)}, {vr(QF[q],4)}, 0")
        a(f"v_mfma_f32_32x32x16_bf16 {vr(s,16)}, {vr(KF[1]+4,4)}, {vr(QF[q]+4,4)}, {vr(s,16)}")
    a("s_nop 15")
    for q in range(2):
        s = SB[q]
        for k in range(8):
            a(f"v_max3_f32 v{AT+4+q}, v{s+2*k}, v{s+2*k+1}, v{AT+4+q}")
    a(f"s_sub_u32 s{AS_IT}, s{AS_IT}, 1")
    a(f"s_cmp_eq_u32 s{AS_IT}, 0")
    a("s_cbranch_scc1 p2_maxdone")
    a("s_add_u32 s12, s12, 2048")
    for t in range(2):
        a(f"buffer_load_dwordx4 {vr(KF[1]+4*t,4)}, v{AV_K0}, {R(SRD_WS)}, s12 offen offset:{t*1024}{LD}")
    a("s_waitcnt vmcnt(0)")
    a("s_branch p2_maxloop")
    a.label("p2_maxdone")
    a(f"s_cmp_eq_u32 s{AS_MODE}, 1")
    a("s_cbranch_scc1 p2_k0ok")
    for t in range(2):
        a(f"buffer_load_dwordx4 {vr(KF[1]+4*t,4)}, v{AV_K0}, {R(SRD_WS)}, s{AS_KB} offen offset:{t*1024}{LD}")
    a("s_waitcnt vmcnt(0)")
    a.label("p2_k0ok")
    for q in range(2):
        m = AT + 4 + q
        a(f"v_mov_b32 v{AT+6}, v{m}")
        a("s_nop 1")
        a(f"v_permlane32_swap_b32 v{m}, v{AT+6}")
        a("s_nop 1")
        a(f"v_max_f32 v{m}, v{m}, v{AT+6}")
        for r in range(16):
            a(f"v_sub_f32 v{NM[q]+r}, 0, v{m}")
    a("s_nop 1")
    a.extend(a_qk(0, 1))
    a(f"s_mov_b32 s{AS_RD}, 0")
    a(f"s_mov_b32 s{AS_WR}, {3*A_SLOT}")
    a(f"v_mov_b32 v{AV_KA}, v{AV_K0}")
    a("s_waitcnt vmcnt(8)")
    sync_block(a, "a_s0", AV_CNT, AV_ONE, AV_CK, AS_TG, 12)
    ex = {-1: a_reads(0, 0)[:2], 3: a_reads(0, 0)[2:]}
    a.extend(a_slot(0, 1, 1, 1, 1, ex, do_pv=False))
    a("s_waitcnt lgkmcnt(0)")
    a(f"s_mov_b32 s{AS_IT}, 15")
    a("s_setprio 0")
    stamp(a, 6)
    def stage(last):
        for u in range(A_KT):
            b = u & 1
            fin = last and u == A_KT - 1
            ex1 = {}; ex2 = {}
            if not fin:
                rd = a_reads((u + 1) % A_KT, b ^ 1, k=not (last and u == A_KT - 2))
                for p, r in zip((3, 8, 18, 18), rd):
                    ex1.setdefault(p, []).append(r)
                ex2[18] = ["s_waitcnt lgkmcnt(0)"]
            if not last:
                if u == 0:
                    ex2[3] = [f"s_add_u32 s{AS_TG}, s{AS_TG}, 4"]
                    ex2[8] = [f"s_add_u32 s{AS_RD}, s{AS_RD}, {A_SLOT}"]
                    ex2[13] = [f"s_and_b32 s{AS_RD}, s{AS_RD}, {A_SLOT*A_NSLOT-1}"]
                if u == 1:
                    ex2[3] = [f"s_cmp_le_u32 s{AS_IT}, 2"]
                    ex2[8] = [f"s_cselect_b32 s{AS_K}, 0x40000000, s{AS_K}"]
                    ex2[13] = [f"s_cselect_b32 s{AS_V}, 0x40000000, s{AS_V}"]
                    ex2[18] = ["s_waitcnt vmcnt(4) lgkmcnt(0)", f"ds_add_u32 v{AV_CNT}, v{AV_ONE}"]
                if u == 2:
                    ex2[8] = [f"ds_read_b32 v{AV_CK}, v{AV_CNT}"]
                    va, sa = sync_eval("a_ck", AV_CNT, AV_CK, AS_TG, 12)
                    ex2[21] = va + [f"v_add_u32 v{AV_KA}, s{AS_RD}, v{AV_K0}"]
                    carry = sa
                if u == 3:
                    d = a_dma(f"s{AS_WR}")
                    d[0] = [x for x in d[0] if x != "s_nop 0"]; d[2] = [x for x in d[2] if x != "s_nop 0"]
                    ex1[-1] = carry + [d[0].pop(0)]
                    ex1[13] = d[0] + d[1] + [d[2].pop(0)]
                    ex2[-1] = d[2]
                    ex2[3] = d[3]
                    ex2[8] = [f"s_add_u32 s{AS_WR}, s{AS_WR}, {A_SLOT}"]
                    ex2[13] = [f"s_and_b32 s{AS_WR}, s{AS_WR}, {A_SLOT*A_NSLOT-1}"]
            emit(a, a_slot(1, 0, b, 0, b, ex1, do_qk=not fin))
            if fin: a("s_nop 0")
            emit(a, a_slot(0, 1, b, 1, b, ex2, do_exp=not fin))
    a.raw(".p2align 3")
    a.label("p2_aloop")
    stage(False)
    a(f"s_sub_u32 s{AS_IT}, s{AS_IT}, 1")
    a(f"s_cmp_lg_u32 s{AS_IT}, 0")
    a("s_cbranch_scc1 p2_aloop")
    stage(True)
    stamp(a, 7)
    a(f"v_and_b32 v{AT}, 16, v{V_LANE}")
    a(f"v_cmp_eq_u32 vcc, 0, v{AT}")
    a("s_nop 7")
    for q in range(2):
        l = LA[q]
        a(f"v_add_f32 v{l}, v{l}, v{l+1}")
        a(f"v_add_f32 v{l+2}, v{l+2}, v{l+3}")
        a(f"v_cndmask_b32 v{l}, v{l+2}, v{l}, vcc")
    a(f"s_cmp_lg_u32 s{AS_MODE}, 1")
    a("s_cbranch_scc1 p2_afin")
    a(f"v_add_f32 v{AT}, v{LA[0]}, v{LA[1]}")
    a(f"s_mov_b32 s12, {hx(f2u(2.0**60))}")
    a(f"v_cmp_ngt_f32 vcc, s12, v{AT}")
    a(f"v_mov_b32 v{AT}, {L_AFLAG}")
    a("s_nop 3")
    a("s_cbranch_vccz p2_nobad")
    a(f"ds_write_b32 v{AT}, v{AV_ONE}")
    a.label("p2_nobad")
    a("s_waitcnt vmcnt(0) lgkmcnt(0)")
    sync_block(a, "a_s1", AV_CNT, AV_ONE, AV_CK, AS_TG, 12)
    a(f"ds_read_b32 v{AT+1}, v{AT}")
    a("s_waitcnt lgkmcnt(0)")
    a(f"v_readfirstlane_b32 s12, v{AT+1}")
    a("s_cmp_eq_u32 s12, 0")
    a("s_cbranch_scc1 p2_afin")
    a(f"s_mov_b32 s{AS_MODE}, 64")
    a("s_branch p2_restart")
    a.label("p2_afin")
    for q in range(2):
        a(f"v_rcp_f32 v{LA[q]}, v{LA[q]}")
    a(f"v_bfe_u32 v{AT}, v{V_LANE}, 3, 1")
    a(f"v_lshlrev_b32 v{AT}, 10, v{AT}")
    a(f"v_lshrrev_b32 v{AT+1}, 4, v{V_LANE}")
    a(f"v_lshl_add_u32 v{AT}, v{AT+1}, 7, v{AT}")
    a(f"v_and_b32 v{AT+1}, 7, v{V_LANE}")
    a(f"v_lshl_add_u32 v{AT}, v{AT+1}, 4, v{AT}")
    a(f"s_lshl_b32 s12, s{AS_QB}, 1")
    a(f"s_lshr_b32 s13, s{S_W}, 1")
    a("s_add_u32 s12, s12, s13")
    a(f"s_mul_i32 s12, s12, {OU_MT}")
    a(f"s_lshl_b32 s13, s{AS_H}, 13")
    a("s_add_u32 s12, s12, s13")
    a(f"s_and_b32 s13, s{S_W}, 1")
    a("s_lshl_b32 s13, s13, 12")
    a("s_add_u32 s12, s12, s13")
    a(f"s_add_u32 s12, s12, {hx(WS_OU)}")
    for q in range(2):
        o = OA[q]
        for r in range(16):
            a(f"v_mul_f32 v{o+r}, v{o+r}, v{LA[q]}")
        t = SB[q]
        for ch in range(2):
            a(f"v_cvt_pk_bf16_f32 v{t+4*ch}, v{o+4*ch}, v{o+4*ch+1}")
            a(f"v_cvt_pk_bf16_f32 v{t+4*ch+1}, v{o+4*ch+2}, v{o+4*ch+3}")
            a(f"v_cvt_pk_bf16_f32 v{t+4*ch+2}, v{o+8+4*ch}, v{o+8+4*ch+1}")
            a(f"v_cvt_pk_bf16_f32 v{t+4*ch+3}, v{o+8+4*ch+2}, v{o+8+4*ch+3}")
            a(f"buffer_store_dwordx4 {vr(t+4*ch,4)}, v{AT}, {R(SRD_WS)}, s12 offen offset:{q*2048+ch*512}{SC}")
    a(f"s_lshl_b32 s14, s{AS_H}, 3")
    a(f"s_add_u32 s14, s14, s{AS_QB}")
    a("s_lshl_b32 s14, s14, 7")
    a(f"s_add_u32 s14, s14, {hx(WS_FL + FL_2A)}")
    a(f"s_mov_b32 s15, {L_C2A}")

GV_A0, GV_D, GV_W0, GV_W1, GV_BO, GV_L8, GV_CNT, GV_ONE, GV_CK = 2, 4, 5, 6, 7, 8, 1, 3, 10
AF = 12; WB = [40, 56, 72, 88]; GACC = 104; GT = 160; Z1R = [168, 184]
GS_KA, GS_KW, GS_IT, GS_TI, GS_J, GS_TG, GS_Z0, GS_Z1 = 26, 27, 28, 31, 32, 33, 34, 35
GS_M0 = 20

def g_dma(slot):
    ld = lambda off: f"buffer_load_dwordx4 v{GV_D}, {R(SRD_WS)}, s{GS_KA} offen offset:{off}{LD} lds"
    return [[f"s_mov_b32 m0, s{GS_M0+slot}", "s_nop 0", ld(0)], [ld(1024)], [ld(2048)],
            ["s_mov_b32 exec_hi, 0", ld(3072), "s_mov_b32 exec_hi, -1", f"s_add_u32 s{GS_KA}, s{GS_KA}, {G_SLOT}"]]
def g_wloads(wb):
    r = []
    for tb in range(2):
        for phi in range(2):
            r.append([f"buffer_load_dwordx4 {vr(WB[wb]+tb*8+phi*4,4)}, v{GV_W0+tb}, {R(SRD_WS)}, s{GS_KW} offen offset:{phi*1024}{LD}"])
    r[-1].append(f"s_add_u32 s{GS_KW}, s{GS_KW}, 2048")
    return r
def g_z1loads(tb):
    so = f"s{GS_Z0+tb}"
    z = Z1R[tb]
    r = [[f"buffer_load_dwordx4 {vr(z+4*p,4)}, v{GV_W0}, {R(SRD_WS)}, {so} offen offset:{p*1024}{LD}"] for p in range(3)]
    r.append([f"buffer_load_dwordx2 {vr(z+12,2)}, v{GV_L8}, {R(SRD_WS)}, {so} offen offset:3072{LD}",
              f"buffer_load_ushort v{z+14}, v{GV_BO}, {R(SRD_B)}, 0 offen offset:{tb*8}"])
    return r
def g_sched():
    sim = VmSim()
    for k in range(3):
        sim.issue(("D", k), 4); sim.issue(("W", k), 4)
    first = sim.need(("W", 0))
    vm = {}
    for s in range(64):
        i = s // 2
        if s % 2 == 0:
            vm[s] = sim.need(("D", i + 1), ("W", i)) if i < 31 else sim.need(("W", i))
            if i + 3 <= 31: sim.issue(("W", i + 3), 4)
        else:
            vm[s] = None
            if i + 3 <= 31: sim.issue(("D", i + 3), 4)
        if s in (59, 60): sim.issue("Z", 5)
    return first, vm
def g_step(a, s, vm, uid):
    phi = s & 1; i = s // 2
    last = s == 63
    sync = i < 31
    ex = 0
    if phi == 0:
        a(f"s_waitcnt vmcnt({vm})")
        if sync:
            a(f"ds_add_u32 v{GV_CNT}, v{GV_ONE}")
            a(f"s_add_u32 s{GS_TG}, s{GS_TG}, 4")
            ex = 1
    elif sync:
        a("s_waitcnt lgkmcnt(2)")
        va, sa = sync_eval(f"g_ck{uid}", GV_CNT, GV_CK, GS_TG, 12)
        emit(a, va + sa)
    fill = []
    if i + 3 <= 31:
        fill += g_dma((i + 3) % 4) if phi else g_wloads((i + 3) % 4)
    if s in (59, 60): fill += g_z1loads(s - 59)
    nxt = (((s + 1) // 2) % 4) * G_SLOT + ((s + 1) & 1) * G_HALF
    for be in range(7):
        a(f"s_waitcnt lgkmcnt({6 - be if last else 6 + ex})")
        for tb in range(2):
            c = GACC + (be * 2 + tb) * 4
            a(f"v_mfma_f32_16x16x32_bf16 {vr(c,4)}, {vr(AF+4*be,4)}, {vr(WB[i%4]+tb*8+phi*4,4)}, {vr(c,4)}")
        if not last:
            a(f"ds_read_b128 {vr(AF+4*be,4)}, v{GV_A0} offset:{nxt+be*1024}")
        if phi == 0 and sync and be == 4:
            a(f"ds_read_b32 v{GV_CK}, v{GV_CNT}")
            ex = 2
        if be < len(fill):
            a.extend(fill[be])

def gen_gemm2_setup(a):
    a(f"s_and_b32 s12, s{S_X}, 3")
    a("s_lshl_b32 s12, s12, 2")
    a(f"s_lshr_b32 s13, s{S_C}, 3")
    a(f"s_add_u32 s{GS_TI}, s12, s13")
    a(f"s_lshr_b32 s12, s{S_X}, 2")
    a("s_lshl_b32 s12, s12, 3")
    a(f"s_and_b32 s13, s{S_C}, 7")
    a(f"s_add_u32 s{GS_J}, s12, s13")
    a(f"v_lshlrev_b32 v{GV_W0}, 4, v{V_LANE}")
    a(f"v_add_u32 v{GV_A0}, {G_BASE}, v{GV_W0}")
    a(f"s_mul_i32 s12, s{S_W3}, 3584")
    a(f"v_add_u32 v{GV_D}, s12, v{GV_W0}")
    for k in range(4):
        a(f"s_add_u32 s{GS_M0+k}, s12, {G_BASE + k*G_SLOT}")
    a(f"s_mul_i32 s{GS_KA}, s{GS_J}, {64*7168}")
    a(f"s_add_u32 s{GS_KA}, s{GS_KA}, {hx(WS_Z2)}")
    a(f"s_lshl_b32 s12, s{GS_TI}, 2")
    a(f"s_add_u32 s12, s12, s{S_W3}")
    a(f"v_add_u32 v{GV_W1}, 0x10000, v{GV_W0}")
    a(f"s_lshl_b32 s{GS_KW}, s12, 17")
    a(f"s_add_u32 s{GS_KW}, s{GS_KW}, {hx(WS_SPI)}")
    a("s_lshl_b32 s13, s12, 5")
    a(f"v_bfe_u32 v{GT}, v{V_LANE}, 2, 2")
    a(f"v_lshlrev_b32 v{GT}, 3, v{GT}")
    a(f"v_and_b32 v{GT+1}, 3, v{V_LANE}")
    a(f"v_add3_u32 v{GT}, v{GT}, v{GT+1}, s13")
    a(f"v_lshlrev_b32 v{GV_BO}, 1, v{GT}")
    a(f"v_lshlrev_b32 v{GV_L8}, 3, v{V_LANE}")
    a(f"s_add_u32 s{GS_Z0}, s13, s{GS_J}")
    a(f"s_mul_i32 s{GS_Z0}, s{GS_Z0}, 3584")
    a(f"s_add_u32 s{GS_Z0}, s{GS_Z0}, {hx(WS_Z1)}")
    a(f"s_add_u32 s{GS_Z1}, s{GS_Z0}, {16*3584}")
    a(f"s_mov_b32 s{GS_TG}, 0")
    a(f"v_lshlrev_b32 v{GV_CNT}, 2, v{V_LANE}")
    a(f"v_add_u32 v{GV_CNT}, {L_GCNT}, v{GV_CNT}")
    a(f"v_mov_b32 v{GV_ONE}, 1")
    a(f"s_lshl_b32 s13, s{GS_TI}, 4")
    a(f"v_and_b32 v{GT+2}, 15, v{V_LANE}")
    a(f"v_add_u32 v{GT+2}, s13, v{GT+2}")
    a(f"v_bfe_u32 v{GT+3}, v{V_LANE}, 4, 1")
    a(f"v_lshl_add_u32 v{GT+2}, v{GT+3}, 8, v{GT+2}")
    a(f"s_lshl_b32 s13, s{GS_J}, 3")
    a("s_add_u32 s14, s13, 352")
    a(f"v_add_u32 v{GT+3}, s14, v{V_LANE}")
    a(f"s_lshr_b32 s14, s{GS_TI}, 1")
    a("s_add_u32 s13, s13, s14")
    a("s_add_u32 s13, s13, 256")
    a(f"v_cmp_gt_u32 vcc, 32, v{V_LANE}")
    a(f"v_mov_b32 v{GT+4}, s13")
    a("s_nop 0")
    a(f"v_cndmask_b32 v{GT+2}, v{GT+3}, v{GT+2}, vcc")
    a(f"v_cmp_gt_u32 vcc, 40, v{V_LANE}")
    a("s_nop 1")
    a(f"v_cndmask_b32 v{GT+2}, v{GT+4}, v{GT+2}, vcc")
    a(f"v_lshlrev_b32 v{GT+2}, 7, v{GT+2}")

def gen_gemm2(a):
    for r in range(56): a(f"v_mov_b32 v{GACC+r}, 0")
    a(f"s_cmp_lg_u32 s{S_W}, 4")
    a("s_cbranch_scc1 g_np")
    a(f"s_mov_b32 s12, {hx(WS_FL + FL_1Q)}")
    poll(a, "g_pl", [GT + 2], "s12", GT + 4, 13)
    a.label("g_np")
    sync_block(a, "g_sp", GV_CNT, GV_ONE, GV_CK, GS_TG, 12)
    stamp(a, 5)
    first, vm = g_sched()
    for k in range(3):
        for g in g_dma(k): a.extend(g)
        for g in g_wloads(k): a.extend(g)
    a(f"s_waitcnt vmcnt({first})")
    sync_block(a, "g_s0", GV_CNT, GV_ONE, GV_CK, GS_TG, 12)
    a("s_setprio 0")
    stamp(a, 6)
    for be in range(7):
        a(f"ds_read_b128 {vr(AF+4*be,4)}, v{GV_A0} offset:{be*1024}")
    for s in range(8, 56):
        assert vm[s] == vm[8 + s % 8], (s, vm)
    for s in range(8):
        assert vm[s] is None or vm[s] >= vm[8 + s], (s, vm)
    a(f"s_mov_b32 s{GS_IT}, 7")
    a.raw(".p2align 3")
    a.label("p2_gloop")
    for s in range(8, 16):
        g_step(a, s, vm[s], s)
    a(f"s_sub_u32 s{GS_IT}, s{GS_IT}, 1")
    a(f"s_cmp_lg_u32 s{GS_IT}, 0")
    a("s_cbranch_scc1 p2_gloop")
    for s in range(56, 64):
        g_step(a, s, vm[s], s)
    stamp(a, 7)
    a(f"s_and_b32 s16, s{GS_J}, 1")
    a(f"s_mul_i32 s17, s{GS_J}, 7")
    a("s_add_u32 s17, s17, s16")
    a("s_lshr_b32 s17, s17, 1")
    a("s_add_u32 s17, s17, 32")
    a("s_lshl_b32 s17, s17, 13")
    a(f"s_mul_i32 s18, s{GS_TI}, {OU_MT}")
    a("s_add_u32 s17, s17, s18")
    a(f"s_lshl_b32 s18, s{S_W3}, 11")
    a("s_add_u32 s17, s17, s18")
    a(f"s_add_u32 s17, s17, {hx(WS_OU)}")
    a("s_add_u32 s18, s17, 8192")
    a("s_add_u32 s19, s17, 16384")
    a(f"s_mov_b32 s20, {3*8192}")
    a("s_cmp_eq_u32 s16, 0")
    a(f"s_cselect_b32 s20, s20, {hx(-8192+8)}")
    a("s_add_u32 s20, s20, s17")
    a("s_waitcnt vmcnt(0)")
    for tb in range(2):
        a(f"v_lshlrev_b32 v{Z1R[tb]+14}, 16, v{Z1R[tb]+14}")
    for tb in range(2):
        for be in range(7):
            c = GACC + (be * 2 + tb) * 4
            z = Z1R[tb] + 2 * be
            t = GT
            for e in range(4):
                a(f"v_add_f32 v{c+e}, v{c+e}, v{Z1R[tb]+14}")
            a(f"v_lshlrev_b32 v{t}, 16, v{z}")
            a(f"v_and_b32 v{t+1}, 0xffff0000, v{z}")
            a(f"v_lshlrev_b32 v{t+2}, 16, v{z+1}")
            a(f"v_and_b32 v{t+3}, 0xffff0000, v{z+1}")
            for e in range(4):
                a(f"v_mul_f32 v{c+e}, v{c+e}, v{t+e}")
            d = WB[tb] + 2 * be
            a(f"v_cvt_pk_bf16_f32 v{d}, v{c}, v{c+1}")
            a(f"v_cvt_pk_bf16_f32 v{d+1}, v{c+2}, v{c+3}")
        for p in range(3):
            a(f"buffer_store_dwordx4 {vr(WB[tb]+4*p,4)}, v{GV_W0}, {R(SRD_WS)}, s{17+p} offen offset:{tb*1024}{SC}")
        a(f"buffer_store_dwordx2 {vr(WB[tb]+12,2)}, v{GV_W0}, {R(SRD_WS)}, s20 offen offset:{tb*1024}{SC}")
    a(f"s_lshl_b32 s14, s{GS_TI}, 4")
    a(f"s_add_u32 s14, s14, s{GS_J}")
    a("s_lshl_b32 s14, s14, 7")
    a(f"s_add_u32 s14, s14, {hx(WS_FL + FL_2G)}")
    a(f"s_mov_b32 s15, {L_C2G}")

K_SLOT = 24576; K_NSLOT = 6; K_WOFF = 16384
KV_A0, KV_A, KV_W0a, KV_W0b, KV_Wa, KV_Wb, KV_DA, KV_DW = 2, 3, 4, 5, 6, 7, 8, 1
FR = [16, 48]; KACC = [200, 216]; XR = 232
KS_MT, KS_NT, KS_RD, KS_WR, KS_KA, KS_KW, KS_M0A, KS_M0W, KS_IT = 24, 25, 26, 27, 28, 29, 30, 31, 32

def k_mf(buf, accs):
    r = []
    for kk in range(2):
        for mb in range(2):
            for b in range(2):
                d = KACC[accs] + (mb * 2 + b) * 4
                r.append(f"v_mfma_f32_16x16x32_bf16 {vr(d,4)}, {vr(FR[buf]+16+(kk*2+b)*4,4)}, {vr(FR[buf]+(kk*2+mb)*4,4)}, {vr(d,4)}")
    return r
def k_reads(buf):
    r = []
    for kk in range(2):
        for mb in range(2):
            r.append(f"ds_read_b128 {vr(FR[buf]+(kk*2+mb)*4,4)}, v{KV_A} offset:{kk*8192+mb*1024}")
        for b in range(2):
            for rho in range(2):
                r.append(f"ds_read_b64_tr_b16 {vr(FR[buf]+16+(kk*2+b)*4+2*rho,2)}, v{KV_Wa+b} offset:{K_WOFF+kk*4096+rho*2048}")
    return r
def k_dma():
    return [[f"s_add_u32 m0, s{KS_WR}, s{KS_M0A}", "s_nop 0",
             f"buffer_load_dwordx4 v{KV_DA}, {R(SRD_WS)}, s{KS_KA} offen{LD} lds"],
            [f"buffer_load_dwordx4 v{KV_DA}, {R(SRD_WS)}, s{KS_KA} offen offset:1024{LD} lds",
             f"s_add_u32 s{KS_KA}, s{KS_KA}, 16384"],
            [f"s_add_u32 m0, s{KS_WR}, s{KS_M0W}", "s_nop 0",
             f"buffer_load_dwordx4 v{KV_DW}, {R(SRD_WS)}, s{KS_KW} offen{LD} lds",
             f"s_add_u32 s{KS_KW}, s{KS_KW}, 8192"]]
def k_adv():
    return [f"s_mov_b32 s{KS_WR}, s{KS_RD}",
            f"s_add_u32 s{KS_RD}, s{KS_RD}, {K_SLOT}",
            f"s_cmp_eq_u32 s{KS_RD}, {K_SLOT*K_NSLOT}",
            f"s_cselect_b32 s{KS_RD}, 0, s{KS_RD}",
            f"v_add_u32 v{KV_A}, s{KS_RD}, v{KV_A0}",
            f"v_add_u32 v{KV_Wa}, s{KS_RD}, v{KV_W0a}",
            f"v_add_u32 v{KV_Wb}, s{KS_RD}, v{KV_W0b}"]
def k_step(a, buf, accs, vm, do_read, dmas):
    a(f"s_waitcnt vmcnt({vm}) lgkmcnt(0)" if vm is not None else "s_waitcnt lgkmcnt(0)")
    if do_read:
        a("s_barrier")
    sl = {}
    gs = []
    for d in dmas:
        g = k_dma()
        if d is not None:
            g[0] = [f"s_mov_b32 s{KS_WR}, {d}"] + g[0]
        gs += g
    for p, g in zip((-1, 0, 1, 2, 3, 4), gs):
        sl.setdefault(p, []).extend(g)
    if do_read:
        for k, r in enumerate(k_reads(buf ^ 1)):
            sl.setdefault(min(k // 2, 5), []).append(r)
        sl.setdefault(6, []).extend(k_adv())
    a.extend(place(k_mf(buf, accs), sl))

def gen_out(a):
    a(f"s_and_b32 s16, s{S_X}, 3")
    a("s_lshl_b32 s16, s16, 2")
    a(f"s_lshr_b32 s17, s{S_C}, 3")
    a(f"s_add_u32 s{KS_MT}, s16, s17")
    a(f"s_lshr_b32 s16, s{S_X}, 2")
    a("s_lshl_b32 s16, s16, 3")
    a(f"s_and_b32 s17, s{S_C}, 7")
    a(f"s_add_u32 s{KS_NT}, s16, s17")
    a(f"s_lshr_b32 s19, s{S_W}, 2")
    a(f"v_lshlrev_b32 v10, 4, v{V_LANE}")
    a(f"s_lshl_b32 s{KS_M0A}, s{S_W}, 11")
    a(f"v_add_u32 v{KV_DA}, s{KS_M0A}, v10")
    a(f"s_mul_i32 s{KS_KA}, s{KS_MT}, {OU_MT}")
    a(f"s_add_u32 s{KS_KA}, s{KS_KA}, {hx(WS_OU)}")
    a(f"s_lshl_b32 s20, s{S_W}, 10")
    a(f"s_add_u32 s{KS_M0W}, s20, {K_WOFF}")
    a(f"v_add_u32 v{KV_DW}, s20, v10")
    a(f"s_mul_i32 s{KS_KW}, s{KS_NT}, {WI_NT}")
    a(f"s_add_u32 s{KS_KW}, s{KS_KW}, {hx(WS_WI)}")
    a(f"s_lshl_b32 s20, s{S_W3}, 11")
    a(f"v_add_u32 v{KV_A0}, s20, v10")
    a(f"v_bfe_u32 v11, v{V_LANE}, 2, 2")
    a(f"v_lshrrev_b32 v12, 4, v{V_LANE}")
    a("v_lshl_add_u32 v13, v12, 2, v11")
    a("v_bfe_u32 v14, v13, 1, 2")
    a(f"v_and_b32 v15, 3, v{V_LANE}")
    a("v_lshlrev_b32 v15, 3, v15")
    a("v_lshl_add_u32 v15, v13, 7, v15")
    a("s_lshl_b32 s20, s19, 1")
    a("v_xor_b32 v14, s20, v14")
    a(f"v_lshl_add_u32 v{KV_W0a}, v14, 5, v15")
    a("v_xor_b32 v14, 1, v14")
    a(f"v_lshl_add_u32 v{KV_W0b}, v14, 5, v15")
    a(f"s_lshl_b32 s20, s{KS_MT}, 2")
    a(f"s_add_u32 s20, s20, s{S_W3}")
    a("s_lshl_b32 s20, s20, 5")
    a("v_lshlrev_b32 v11, 3, v11")
    a(f"v_and_b32 v13, 3, v{V_LANE}")
    a("v_add3_u32 v11, v11, v13, s20")
    a("v_lshlrev_b32 v11, 11, v11")
    a("v_lshl_add_u32 v11, v12, 3, v11")
    a(f"s_lshl_b32 s20, s{KS_NT}, 7")
    a("s_lshl_b32 s21, s19, 6")
    a("s_add_u32 s20, s20, s21")
    a("v_add_u32 v11, s20, v11")
    a("v_add_u32 v12, 0x2000, v11")
    for r in range(32): a(f"v_mov_b32 v{KACC[0]+r}, 0")
    a(f"v_mov_b32 v{KV_A}, v{KV_A0}")
    a(f"v_mov_b32 v{KV_Wa}, v{KV_W0a}")
    a(f"v_mov_b32 v{KV_Wb}, v{KV_W0b}")
    a(f"s_mov_b32 s{KS_RD}, 0")
    a(f"s_lshl_b32 s20, s{KS_NT}, 4")
    a(f"v_add_u32 v240, s20, v{V_LANE}")
    a(f"s_mul_i32 s20, s{KS_NT}, 14")
    a("s_sub_u32 s20, s20, 16")
    a(f"v_min_u32 v241, 29, v{V_LANE}")
    a("v_add_u32 v241, s20, v241")
    a(f"v_cmp_gt_u32 vcc, 16, v{V_LANE}")
    a(f"s_lshr_b32 s20, s{KS_MT}, 1")
    a(f"v_lshlrev_b32 v242, 3, v{V_LANE}")
    a("v_cndmask_b32 v240, v241, v240, vcc")
    a("v_add_u32 v242, s20, v242")
    a(f"s_lshl_b32 s20, s{KS_MT}, 4")
    a("s_add_u32 s20, s20, 256")
    a(f"v_and_b32 v243, 15, v{V_LANE}")
    a("v_add_u32 v243, s20, v243")
    a(f"v_cmp_gt_u32 vcc, 32, v{V_LANE}")
    a("v_lshlrev_b32 v240, 7, v240")
    a("s_nop 0")
    a("v_cndmask_b32 v242, v243, v242, vcc")
    a("v_lshlrev_b32 v242, 7, v242")
    flag_store_last(a, "f2", "s14", "s15", 244, 16)
    a(f"s_cmp_lg_u32 s{S_W}, 0")
    a("s_cbranch_scc1 k_np0")
    a(f"s_mov_b32 s16, {hx(WS_FL + FL_1Q)}")
    poll(a, "k_p0", [240], "s16", 244, 17)
    a.label("k_np0")
    a("s_barrier")
    for st in range(3):
        a(f"s_mov_b32 s{KS_WR}, {st*K_SLOT}")
        a.extend(k_dma()[2])
    a(f"s_cmp_lg_u32 s{S_W}, 0")
    a("s_cbranch_scc1 k_np1")
    a(f"s_mov_b32 s16, {hx(WS_FL + FL_2A)}")
    poll(a, "k_p1", [242], "s16", 244, 17)
    a.label("k_np1")
    a("s_barrier")
    stamp(a, 8)
    sim = VmSim()
    for st in range(3):
        a(f"s_mov_b32 s{KS_WR}, {st*K_SLOT}")
        for g in k_dma()[:2]: a.extend(g)
        sim.issue(st, 2)
        if st == 0: a("s_barrier")
    a(f"s_waitcnt vmcnt({sim.need(0)})")
    a("s_barrier")
    a.extend(k_reads(0))
    a.extend(k_adv())
    ramp = {0: [3, 4], 1: [5, 6], 2: [7, 8], 3: [9]}
    for s in range(4):
        k_step(a, s & 1, 0, sim.need(s + 1), True, [(st % K_NSLOT) * K_SLOT for st in ramp[s]])
        for st in ramp[s]: sim.issue(st, 3)
    VM = 3 * (K_NSLOT - 2)
    for s in range(4, 38):
        assert sim.need(s + 1) == VM
        sim.issue(s + K_NSLOT, 3)
    def loop(lbl, n, accs):
        a(f"s_mov_b32 s{KS_IT}, {n}")
        a.raw(".p2align 3")
        a.label(lbl)
        k_step(a, 0, accs, VM, True, [None])
        k_step(a, 1, accs, VM, True, [None])
        a(f"s_sub_u32 s{KS_IT}, s{KS_IT}, 1")
        a(f"s_cmp_lg_u32 s{KS_IT}, 0")
        a(f"s_cbranch_scc1 {lbl}")
    loop("k3_l1", 6, 0)
    loop("k3_l3", 11, 1)
    for mb in range(2):
        for b in range(2):
            a(f"buffer_load_dwordx2 {vr(XR+(mb*2+b)*2,2)}, v{11+mb}, {R(SRD_X)}, 0 offen offset:{b*32}")
    sim.issue("x", 4)
    for s in range(38, 44):
        k_step(a, s & 1, 1, sim.need(s + 1) if s < 43 else None, s < 43, [])
    a("s_waitcnt vmcnt(0)")
    a("s_nop 7")
    a(f"s_mov_b32 s20, {hx(f2u(-math.log2(math.e)))}")
    for k in range(16): a(f"v_mul_f32 v{16+k}, s20, v{KACC[1]+k}")
    for k in range(16): a(f"v_exp_f32 v{16+k}, v{16+k}")
    for k in range(16): a(f"v_add_f32 v{16+k}, 1.0, v{16+k}")
    for k in range(16): a(f"v_rcp_f32 v{16+k}, v{16+k}")
    for k in range(16): a(f"v_mul_f32 v{16+k}, v{16+k}, v{KACC[1]+k}")
    for k in range(8):
        a(f"v_lshlrev_b32 v{32+2*k}, 16, v{XR+k}")
        a(f"v_and_b32 v{33+2*k}, 0xffff0000, v{XR+k}")
    for k in range(16): a(f"v_fmac_f32 v{32+k}, v{16+k}, v{KACC[0]+k}")
    for k in range(8): a(f"v_cvt_pk_bf16_f32 v{48+k}, v{32+2*k}, v{33+2*k}")
    for mb in range(2):
        for b in range(2):
            a(f"buffer_store_dwordx2 {vr(48+(mb*2+b)*2,2)}, v{11+mb}, {R(SRD_OUT)}, 0 offen offset:{b*32}")
    a(f"s_or_b32 s16, s2, s{S_W}")
    a("s_cmp_lg_u32 s16, 0")
    a("s_cbranch_scc1 k3_fin")
    a(f"s_mov_b32 s16, {hx(WS_FL + FL_EP)}")
    flag_store(a, "s16", 60)
    a.label("k3_fin")
    a("s_waitcnt vmcnt(0)")
    stamp_end(a, 0, S_W, 100)
    a("s_endpgm")

def gen_mega(a, name="mega_kernel"):
    del TAIL[:]
    khead(a, name)
    a("s_cmp_ge_u32 s2, 256")
    a("s_cbranch_scc1 m_done")
    stamp_start(a)
    a("s_load_dwordx16 s[8:23], s[0:1], 0")
    a("s_load_dwordx2 s[60:61], s[0:1], 64")
    a("s_load_dwordx2 s[36:37], s[0:1], 80")
    a("s_getpc_b64 s[34:35]")
    a.label("m_pc")
    if "nocw" not in EXP:
        a("v_subrev_u32 v11, 448, v0")
        a("s_and_b32 s26, s2, 0xf8")
        a("s_lshl_b32 s26, s26, 8")
        a("v_cmp_gt_u32 vcc, 16, v11")
        a("v_lshlrev_b32 v11, 7, v11")
        a("v_add_u32 v11, s26, v11")
        a("v_min_u32 v11, m_done - m_pc, v11")
        a("s_and_saveexec_b64 s[28:29], vcc")
        a("s_cbranch_execz m_nocw")
        a("global_load_dword v253, v11, s[34:35]")
        a.label("m_nocw")
        a("s_mov_b64 exec, s[28:29]")
    a("v_lshrrev_b32 v8, 6, v0")
    a(f"v_and_b32 v{V_LANE}, 63, v0")
    a(f"v_readfirstlane_b32 s{S_W}, v8")
    a(f"s_and_b32 s{S_X}, s2, 7")
    a(f"s_lshr_b32 s{S_C}, s2, 3")
    a(f"s_and_b32 s26, s{S_X}, 1")
    a("s_lshl_b32 s26, s26, 2")
    a(f"s_lshr_b32 s27, s{S_C}, 3")
    a(f"s_add_u32 s{S_MT}, s26, s27")
    a(f"s_lshr_b32 s26, s{S_X}, 1")
    a("s_lshl_b32 s26, s26, 3")
    a(f"s_and_b32 s27, s{S_C}, 7")
    a(f"s_add_u32 s{S_JT}, s26, s27")
    a(f"s_and_b32 s{S_W3}, s{S_W}, 3")
    a(f"s_lshl_b32 s26, s{S_MT}, 8")
    a(f"s_lshr_b32 s27, s{S_JT}, 2")
    a("s_lshl_b32 s27, s27, 5")
    a("s_add_u32 s26, s26, s27")
    a(f"s_bfe_u32 s27, s{S_JT}, 0x10001")
    a("s_lshl_b32 s27, s27, 2")
    a("s_add_u32 s26, s26, s27")
    a(f"s_and_b32 s27, s{S_JT}, 1")
    a("s_lshl_b32 s27, s27, 4")
    a("s_add_u32 s26, s26, s27")
    a(f"v_bfe_u32 v10, v{V_LANE}, 2, 1")
    a("v_lshlrev_b32 v10, 3, v10")
    a(f"v_and_b32 v11, 3, v{V_LANE}")
    a("v_add3_u32 v10, v10, v11, s26")
    a("v_lshlrev_b32 v10, 11, v10")
    a(f"v_lshrrev_b32 v11, 5, v{V_LANE}")
    a("v_lshl_add_u32 v10, v11, 8, v10")
    a(f"v_bfe_u32 v11, v{V_LANE}, 3, 2")
    a("v_lshl_add_u32 v10, v11, 3, v10")
    a(f"s_lshl_b32 s27, s{S_W}, 9")
    a("s_waitcnt lgkmcnt(0)")
    srd(a, SRD_X, 8, 2048 * 1024 * 2)
    a(f"s_cmp_ge_u32 s{S_W}, 4")
    a("s_cbranch_scc1 m_skipx")
    for sl in range(4):
        for rho in range(2):
            r = 16 + sl * 4 + rho * 2
            a(f"buffer_load_dwordx2 v[{r}:{r+1}], v10, {R(SRD_X)}, s27 offen offset:{sl*64+rho*32}")
    a.label("m_skipx")
    a(f"s_add_u32 s30, s36, {hx(WS_FL + FL_EP)}")
    a("s_addc_u32 s31, s37, 0")
    a(f"s_load_dword s{S_TAG}, s[30:31], 0")
    a(f"s_mov_b32 s38, {hx(WS_END)}")
    a("s_mov_b32 s39, 0x20000")
    a(f"s_mov_b32 s62, {hx(2048*1024*2)}")
    a("s_mov_b32 s63, 0x20000")
    srd(a, SRD_SP, 18, 2048 * 2048 * 2)
    srd(a, SRD_WO, 12, 1024 * 1024 * 2)
    srd(a, SRD_WOUT, 22, 1792 * 1024 * 2)
    srd(a, SRD_B, 20, 4096)
    a(f"v_lshlrev_b32 v11, 2, v{V_LANE}")
    a("v_mov_b32 v12, 0")
    a(f"ds_write_b32 v11, v12 offset:{L_LNC}")
    a(f"ds_write_b32 v11, v12 offset:{L_LNC+256}")
    a("s_waitcnt lgkmcnt(0)")
    a("s_barrier")
    a(f"s_xor_b32 s30, s{S_TAG}, 0x9e3779b9")
    a("s_mul_i32 s30, s30, 0x85ebca6b")
    a("s_add_u32 s30, s30, 0x632be5ab")
    a("s_add_u32 s31, s30, 1")
    a(f"s_cmp_eq_u32 s30, s{S_TAG}")
    a(f"s_cselect_b32 s{S_TAG}, s31, s30")
    a(f"s_cmp_ge_u32 s{S_W}, 4")
    a("s_cbranch_scc1 m_zwave")

    srd(a, SRD_W, 10, 1024 * 3072 * 2)
    gen_gemm1_q(a)
    gen_ln(a)
    stamp(a, 3, "b")
    flag_store_last(a, "fln", "s16", L_LNC + 256, 12, 21)
    stamp(a, 6, "b")
    mainloop(a, "q")
    if "noprio" not in EXP: a("s_setprio 2")
    gen_q_epilogue(a)
    gen_attn_setup(a)
    stamp(a, 7, "b")
    if STM == "b": a("s_waitcnt vmcnt(0)")
    stamp(a, 8, "b")
    flag_store_last(a, "f1q", f"s{S_F1}", L_C1Q, 10, 12)
    gen_attn(a)
    a("s_branch m_out")

    a.label("m_zwave")
    srd(a, SRD_W, 16, 1024 * 3584 * 2)
    srd(a, 100 - 8, 10, 1024 * 3072 * 2) if False else None
    a("s_mov_b32 s28, s10")
    a("s_mov_b32 s29, s11")
    a(f"s_mov_b32 s30, {hx(1024*3072*2)}")
    a("s_mov_b32 s31, 0x20000")
    a(f"v_lshlrev_b32 v10, 7, v{V_LANE}")
    a("s_mul_i32 s16, s2, 24576")
    a(f"s_lshl_b32 s17, s{S_W3}, 13")
    a("s_add_u32 s16, s16, s17")
    a("s_mul_i32 s18, s2, 28672")
    a(f"s_mul_i32 s17, s{S_W3}, 7168")
    a("s_add_u32 s18, s18, s17")
    a(f"v_min_u32 v11, {55*128}, v10")
    if "nopf" not in EXP:
        a(f"buffer_load_dword v250, v11, {R(SRD_W)}, s18 offen")
        a(f"s_cmp_eq_u32 s{S_W3}, 3")
        a("s_cbranch_scc1 m_tdone")
        a("buffer_load_dword v248, v10, s[28:31], s16 offen")
        a.label("m_tdone")
    gen_gemm1_z_setup(a)
    a(f"s_cmp_ge_u32 s{S_JT}, 16")
    a("s_cbranch_scc1 m_z2wave")
    mainloop(a, "z1")
    if "noprio" not in EXP: a(f"s_setprio {3 if 'zhi' in EXP else 1}")
    gen_z1_epilogue(a)
    a("s_branch m_zjoin")
    a.label("m_z2wave")
    mainloop(a, "z2")
    if "noprio" not in EXP: a(f"s_setprio {3 if 'zhi' in EXP else 1}")
    gen_z2_epilogue(a)
    a.label("m_zjoin")
    gen_gemm2_setup(a)
    stamp(a, 7, "b")
    if STM == "b": a("s_waitcnt vmcnt(0)")
    stamp(a, 8, "b")
    flag_store_last(a, "f1z", f"s{S_F1}", L_C1Z, 10, 12)
    gen_gemm2(a)
    a.label("m_out")
    gen_out(a)
    for l in TAIL: a.raw(l)
    a.label("m_done")
    a("s_endpgm")
    return name, kd(name, 256, 100), f"grid=(256,1,1) block=(512,1,1) lds={SLOT*NSLOT}"
```

```python
import sys, os
sys.path.insert(0, "gen")
from common import *
import gen, mega
FINAL = "recurrent_scan__mha_block__mixer_gmlp__prompt.s"
out = sys.argv[1] if len(sys.argv) > 1 else FINAL
if os.environ.get("PLAIN"):
    name = "recurrent_scan__mha_block__mixer_gmlp__prompt_kernel"
    gen.build([lambda a: mega.gen_mega(a, name)], out)
    t = open(out).read().replace(f"; @launch kernel={name} ", "; @launch ")
    open(out, "w").write(t)
else:
    gen.build([mega.gen_mega], out)
print("wrote", out)
```
